```python
import torch

def _softmax(x, axis=-1):
    return torch.softmax(x, dim=axis)
def _gelu(x):
    return torch.nn.functional.gelu(x, approximate="tanh")
def _silu(x):
    return torch.nn.functional.silu(x)
def _sigmoid(x):
    return torch.sigmoid(x)
def _layernorm(x, axis=-1, eps=1e-5):
    m = x.mean(dim=axis, keepdim=True)
    v = x.var(dim=axis, keepdim=True, unbiased=False)
    return (x - m) / torch.sqrt(v + eps)
def _scatter_add(tgt, idx, src, axis=0):
    return tgt.clone().index_add_(axis, idx, src)
def _segment_sum(src, seg, n):
    out = torch.zeros((n,) + src.shape[1:], dtype=src.dtype)
    return out.index_add_(0, seg, src)
def _pad(x, pw):
    flat = tuple(v for pair in reversed(pw) for v in pair)
    return torch.nn.functional.pad(x, flat)

kernel_name = 'standalone__mha_softmax__near_ridge'

def setup_inputs():

    _w = (lambda a: (lambda t: t.to(torch.bfloat16) if t.is_floating_point() else t)(torch.as_tensor(a)))
    B, H, Sq, Sk, D = 8, 32, 512, 512, 192
    return {
        "q": _w((lambda *s: torch.randn(*s, dtype=torch.bfloat16) * 0.8)(B, H, Sq, D)),
        "k": _w((lambda *s: torch.randn(*s, dtype=torch.bfloat16) * 0.8)(B, H, Sk, D)),
        "v": _w((lambda *s: torch.randn(*s, dtype=torch.bfloat16) * 0.05)(B, H, Sk, D)),
    }

def reference(q, k, v):
    scale = q.shape[-1] ** -0.5
    scores = torch.einsum("bhqd,bhkd->bhqk", q, k) * scale
    p = _softmax(scores, axis=-1)
    return torch.einsum("bhqk,bhkd->bhqd", p, v)
```

```python
import re

def R(f, a, n=1):
    return [f"{f}{a+i}" for i in range(n)]

def rr(f, a, n=1):
    return f"{f}{a}" if n == 1 else f"{f}[{a}:{a+n-1}]"

class I:
    __slots__ = ("t", "k", "rd", "wr", "srcc", "tag", "need", "cost", "note", "lds_rd", "lds_wr", "stdata", "auto")
    def __init__(s, t, k, rd=(), wr=(), srcc=(), tag=None, need=None, cost=1, lds_rd=None, lds_wr=None, stdata=()):
        s.t = t; s.k = k; s.rd = set(rd); s.wr = set(wr); s.srcc = set(srcc); s.tag = tag
        s.need = need; s.cost = cost; s.note = ""; s.lds_rd = lds_rd; s.lds_wr = lds_wr
        s.stdata = set(stdata); s.auto = False
    def __repr__(s): return s.t

def regs_of(op):
    m = re.fullmatch(r"([vas])(\d+)", op)
    if m: return [op]
    m = re.fullmatch(r"([vas])\[(\d+):(\d+)\]", op)
    if m: return [f"{m.group(1)}{i}" for i in range(int(m.group(2)), int(m.group(3)) + 1)]
    if op in ("vcc", "m0", "exec", "scc"): return [op]
    if op.startswith("-") or op.startswith("|"): return regs_of(op.strip("-|"))
    return []

TRANS = ("v_exp_f32", "v_rcp_f32", "v_log_f32", "v_rsq_f32")

def valu(op, dst, *src, mods="", rdw=False):
    t = f"{op} {dst}, " + ", ".join(str(x) for x in src) + (" " + mods if mods else "")
    rd = [r for x in src for r in regs_of(str(x))]
    wr = regs_of(dst)
    if rdw: rd += wr
    k = "trans" if op in TRANS else "valu"
    return I(t, k, rd, wr, cost=2 if k == "trans" else 1)

def swap(op, a, b):
    return I(f"{op} {a}, {b}", "perm", [a, b], [a, b])

def salu(op, dst, *src, scc=True):
    t = f"{op} " + ", ".join(([dst] if dst else []) + [str(x) for x in src])
    rd = [r for x in src for r in regs_of(str(x))]
    wr = regs_of(dst) if dst else []
    return I(t, "salu", rd, wr)

def mfma(d, a, b, c):
    t = f"v_mfma_f32_16x16x32_bf16 {d}, {a}, {b}, {c}"
    cr = regs_of(str(c))
    return I(t, "mfma", regs_of(a) + regs_of(b) + cr, regs_of(d), srcc=cr, cost=2)

def ds_read(op, dst, addr, off, lds=None):
    assert 0 <= off < 65536, off
    return I(f"{op} {dst}, {addr} offset:{off}", "ds", regs_of(addr), regs_of(dst), lds_rd=lds)

def dma(voff, srd, soff, off, lds=None, mods=""):
    assert 0 <= off < 4096
    o = f" offset:{off}" if off else ""
    return I(f"buffer_load_dwordx4 {voff}, {srd}, {soff} offen{o}{mods} lds", "dma",
             regs_of(voff) + regs_of(srd) + regs_of(soff) + ["m0"], [], cost=2, lds_wr=lds)

def bload(dst, voff, srd, soff, off, mods="", op="buffer_load_dwordx4"):
    assert 0 <= off < 4096
    o = f" offset:{off}" if off else ""
    return I(f"{op} {dst}, {voff}, {srd}, {soff} offen{o}{mods}", "vld",
             regs_of(voff) + regs_of(srd) + regs_of(soff), regs_of(dst), cost=2)

def bstore(src, voff, srd, soff, off, mods="", op="buffer_store_dwordx4"):
    assert 0 <= off < 4096
    o = f" offset:{off}" if off else ""
    return I(f"{op} {src}, {voff}, {srd}, {soff} offen{o}{mods}", "vst",
             regs_of(src) + regs_of(voff) + regs_of(srd) + regs_of(soff), [], cost=2, stdata=regs_of(src))

def wait(vm=None, lgkm=None):
    return I("s_waitcnt", "wait", need=[vm, lgkm])

def barrier(): return I("s_barrier", "barrier")
def nop(n): return I(f"s_nop {n-1}", "nop", cost=n)
def label(n): return I(f"{n}:", "label", cost=0)
def raw(t, k="salu", rd=(), wr=()): return I(t, k, rd, wr)
def comment(t): return I(f"; {t}", "label", cost=0)

VMK = ("dma", "vld", "vst")
SCALAR = ("salu", "wait", "barrier", "nop", "smem", "branch")

def states(i):
    if i.k == "label": return 0
    if i.k == "nop": return i.cost
    return 1

def insert_waits(tr, ds_age=20, vm_age=None):
    out = []
    dsq = []
    vmq = []
    def cover(q, n):
        del q[:max(0, len(q) - n)]
    for ins in tr:
        if ins.k == "wait":
            vm, lg = ins.need
            if isinstance(vm, (set, frozenset)):
                idx = [j for j, o in enumerate(vmq) if o.lds_wr in vm or o.tag in vm]
                vm = (len(vmq) - 1 - max(idx)) if idx else None
            if isinstance(lg, (set, frozenset)):
                idx = [j for j, o in enumerate(dsq) if o.lds_rd in lg or o.tag in lg]
                lg = (len(dsq) - 1 - max(idx)) if idx else None
            if vm is not None: vm = min(vm, 63)
            if lg is not None: lg = min(lg, 15)
            ins.need = [vm, lg]
            if vm is not None: cover(vmq, vm)
            if lg is not None: cover(dsq, lg)
            out.append(ins); continue
        touched = ins.rd | ins.wr
        for q, which, mx, age in ((dsq, 1, 15, ds_age), (vmq, 0, 63, vm_age)):
            idx = [j for j, o in enumerate(q) if o.wr & touched]
            if not idx: continue
            y = max(idx)
            pos = len(out); p = len(out) - 1
            while p >= 0 and out[p].k != "mfma" and out[p].k != "barrier" and out[p].k != "branch" and not (out[p].k == "label" and not out[p].t.startswith(";")): p -= 1
            merged = None
            if p >= 0 and out[p].k == "mfma" and ins.k == "mfma":
                ipos = {id(o): n for n, o in enumerate(out[p:], p)}
                if id(q[y]) not in ipos:
                    nx = out[p + 1] if p + 1 < len(out) else None
                    if nx is not None and nx.k == "wait" and nx.need[which] is None: merged = nx; pos = p + 1
                    elif nx is not None and nx.k == "wait" and nx.auto: merged = nx; pos = p + 1
                    elif nx is None or nx.k not in SCALAR: pos = p + 1
            after = set(id(o) for o in out[pos:])
            before = [o for o in q if id(o) not in after]
            if age is not None:
                where = {id(o): n for n, o in enumerate(out[max(0, pos - 400):pos], max(0, pos - 400))}
                for j in range(y + 1, len(before)):
                    if pos - where.get(id(before[j]), -10**9) >= age: y = j
            n = min(len(before) - 1 - y, mx)
            if merged is not None:
                old = merged.need[which]
                merged.need[which] = n if old is None else min(old, n)
            else:
                w = wait(); w.need = [None, None]; w.need[which] = n; w.auto = True
                out.insert(pos, w)
            done = len(before) - n
            del q[:max(0, done)]
        out.append(ins)
        if ins.k == "ds": dsq.append(ins)
        if ins.k in VMK: vmq.append(ins)
    res = []
    for ins in out:
        if ins.k == "wait":
            vm, lg = ins.need
            if vm is None and lg is None: continue
            ins.t = "s_waitcnt" + (f" vmcnt({vm})" if vm is not None else "") + (f" lgkmcnt({lg})" if lg is not None else "")
        res.append(ins)
    return res

def required(p, c):
    n = 0
    isv = lambda x: x.k in ("valu", "trans", "perm")
    if isv(p):
        vw = {r for r in p.wr if r[0] in "va" and r != "vcc"}
        sw = {r for r in p.wr if r[0] == "s" or r == "vcc"}
        if c.k == "mfma" and vw & c.rd: n = max(n, 2)
        if c.k == "perm" and vw & c.rd: n = max(n, 2)
        if p.k == "trans" and isv(c) and c.k != "trans" and vw & c.rd: n = max(n, 1)
        if p.k == "trans" and c.k in VMK + ("ds",) and vw & c.rd: n = max(n, 1)
        if ("readfirstlane" in c.t or "readlane" in c.t) and vw & c.rd: n = max(n, 1)
        if "dpp" in c.t and vw & c.rd: n = max(n, 2)
        if isv(c) and sw & c.rd: n = max(n, 4 if "lane" in c.t else 2)
        if c.k in VMK and sw & c.rd: n = max(n, 5)
        if c.k in ("salu", "branch") and sw & c.rd: n = max(n, 1)
    if p.k == "mfma":
        if c.k == "mfma":
            if p.wr & (c.rd - c.srcc): n = max(n, 8)
            if p.wr & c.srcc and p.wr != c.srcc: n = max(n, 6)
            if p.wr & c.srcc and (p.wr & (c.rd - c.srcc)): n = max(n, 8)
        elif isv(c) or c.k in VMK + ("ds",):
            if p.wr & (c.rd | c.wr): n = max(n, 8)
        if isv(c) and p.srcc & c.wr: n = max(n, 3)
        if c.k in ("ds", "vld") and p.srcc & c.wr: n = max(n, 3)
    if p.k == "vst" and len(p.stdata) >= 3:
        if p.stdata & c.wr: n = max(n, 2)
    if p.k == "salu" and "m0" in p.wr and c.k == "dma": n = max(n, 1)
    return n

def fix_hazards(tr, verbose=True):
    out = []; added = []
    for ins in tr:
        if ins.k != "label":
            need = 0; d = 0
            for p in reversed(out[-40:]):
                r = required(p, ins)
                if r > d: need = max(need, r - d)
                d += states(p)
                if d >= 12: break
            if need:
                out.append(nop(need)); added.append((len(out), need, ins.t))
        out.append(ins)
    return out, added

def verify(tr, private=lambda tag: False):
    dsq = []; vmq = []
    landed_own = set(); visible = set()
    issued = {}
    region_of = {}
    region_content = {}
    reads_open = {}
    errs = []
    for n, ins in enumerate(tr):
        if ins.k == "wait":
            vm, lg = ins.need
            if vm is not None: del vmq[:max(0, len(vmq) - vm)]
            if lg is not None: del dsq[:max(0, len(dsq) - lg)]
            continue
        if ins.k == "barrier":
            pend = {o.lds_wr for o in vmq if o.lds_wr}
            for tag in issued:
                if tag not in pend: visible.add(tag)
            pr = {o.lds_rd[1] for o in dsq if o.lds_rd}
            for reg in list(reads_open):
                if reg not in pr: reads_open[reg] = False
            continue
        touched = ins.rd | ins.wr
        for q in (dsq, vmq):
            for o in q:
                if o.wr & touched: errs.append(f"{n}: {ins.t} touches pending result of {o.t}")
        if ins.k == "ds" and ins.lds_rd:
            tag = ins.lds_rd; reg = tag[1]
            if region_content.get(reg) != tag: errs.append(f"{n}: {ins.t} reads {tag} but region holds {region_content.get(reg)}")
            if private(tag):
                if any(o.lds_wr == tag for o in vmq): errs.append(f"{n}: {ins.t} private tile {tag} not landed")
            elif tag not in visible: errs.append(f"{n}: {ins.t} reads {tag} before visible")
            reads_open[reg] = True
        if ins.k == "dma" and ins.lds_wr:
            tag = ins.lds_wr; reg = tag[1]
            if region_content.get(reg) != tag:
                if private(tag):
                    if any(o.lds_rd and o.lds_rd[1] == reg for o in dsq): errs.append(f"{n}: dma {tag} WAR (private)")
                elif reads_open.get(reg): errs.append(f"{n}: dma {tag} into region with unfenced reads")
                region_content[reg] = tag
            if tag in visible: errs.append(f"{n}: dma piece of {tag} after it was declared visible")
            issued[tag] = issued.get(tag, 0) + 1
        if ins.k == "ds": dsq.append(ins)
        if ins.k in VMK: vmq.append(ins)
        if len(vmq) > 63: errs.append(f"{n}: vmcnt overflow")
    for n, ins in enumerate(tr):
        if ins.k == "label": continue
        d = 0
        for p in reversed(tr[max(0, n - 40):n]):
            if required(p, ins) > d: errs.append(f"{n}: hazard {p.t} -> {ins.t}")
            d += states(p)
            if d >= 12: break
    return errs, issued

def est_cycles(tr):
    cyc = 0; i = 0; gap = None
    for n, ins in enumerate(tr):
        if ins.k == "label": continue
        if ins.k == "mfma":
            if gap is not None: cyc += max(16, 8 + 4 * gap)
            gap = 0; first = True; prev = ins; continue
        c = ins.cost
        if gap is None: cyc += 4 * c; continue
        if first and ins.k in SCALAR and c == 1: c = 0
        elif ins.k == "ds" and prev.k in ("valu", "trans", "perm"): c += 2
        first = False; gap += c; prev = ins
    if gap is not None: cyc += max(16, 8 + 4 * gap)
    return cyc
```

```python
import sys, struct, math
sys.path.insert(0, "gen")
from fw import *

OPT = dict(x.split("=") for x in sys.argv[2:])
DIAG = int(OPT.get("diag", 0))
FORCE_SLOW = int(OPT.get("force_slow", 0))
PK = int(OPT.get("pk", 1))
KN = "standalone__mha_softmax__near_ridge_kernel"

TILE = 12288; HEAD = 196608
NK = 4; NV = 4
KRING = 0; VRING = NK * TILE; QST = VRING + NV * TILE
LDS_BYTES = QST + 4 * TILE

def O(x, qb, db): return x * 96 + qb * 48 + db * 4
def S(x, c): return 192 + x * 16 + c * 4
def P(x, qb): return 192 + x * 16 + qb * 8
def L(x, qb): return 224 + 2 * x + qb
def NM(x, qb): return 228 + 2 * x + qb
KA = [232, 233]; VA = [234, 235, 236, 237]; DV = [238, 239, 240]
QV = 241; SV = 242
T = list(range(243, 255))
TS = 255
def QA(blk, x, qb, cc):
    base = 192 if (blk == 1 and x == 0) else x * 48
    return base + qb * 24 + cc * 4
def KF(kb, cc): return 96 + kb * 24 + cc * 4
def VF(db): return 144 + db * 4
SQ, SK, SVV, SO = "s[4:7]", "s[8:11]", "s[12:15]", "s[16:19]"
sKV, sWL, sC, sQB, sW, sTHR, sWS = "s20", "s21", "s22", "s23", "s29", "s28", "s30"
sT = ["s24", "s25", "s26", "s27"]
def FLAG(blk, x, qb): return 44 + 2 * (4 * blk + 2 * x + qb)
CBITS = struct.unpack("<I", struct.pack("<f", 192 ** -0.5 * math.log2(math.e)))[0]
THR = 0x4b800000

def Ktag(t): return (f"K{t}", ("K", t % NK))
def Vtag(t): return (f"V{t}", ("V", t % NV))
QBtag = ("QB", ("QB", 0))

def qk(t, x, n):
    c, cc = divmod(n, 6); qb, kb = divmod(c, 2)
    d = rr("v", S(x, c), 4)
    return mfma(d, rr("a", KF(kb, cc), 4), rr("a", QA(t >> 4, x, qb, cc), 4), d if cc else 0)
def pv(t, x, n):
    qb, db = divmod(n, 12)
    d = rr("v", O(x, qb, db), 4)
    return mfma(d, rr("a", VF(db), 4), rr("v", P(x, qb), 4), d if (t & 15) else 0)
def f_(x, c, r): return valu("v_fma_f32", f"v{S(x,c)+r}", f"v{S(x,c)+r}", sC, f"v{NM(x,c>>1)}")
def e_(x, c, r): return valu("v_exp_f32", f"v{S(x,c)+r}", f"v{S(x,c)+r}")
def a_(x, c, r, first=False):
    l = f"v{L(x,c>>1)}"
    if first and (c & 1) == 0 and r == 0: return valu("v_mov_b32", l, f"v{S(x,c)+r}")
    return valu("v_add_f32", l, l, f"v{S(x,c)+r}")
def cv(x, c, h):
    qb, kb = divmod(c, 2)
    return valu("v_cvt_pk_bf16_f32", f"v{P(x,qb)+2*kb+h}", f"v{S(x,c)+2*h}", f"v{S(x,c)+2*h+1}")
def kread(t, n):
    kb, cc = divmod(n, 6)
    return ds_read("ds_read_b128", rr("a", KF(kb, cc), 4), f"v{KA[cc&1]}", KRING + (t % NK) * TILE + kb * 6144 + (cc >> 1) * 128, lds=Ktag(t))
def vread(t, n):
    db, h = divmod(n, 2)
    return ds_read("ds_read_b64_tr_b16", rr("a", VF(db) + 2 * h, 2), f"v{VA[db&3]}", (t % NV) * TILE + h * 6144 + (db >> 2) * 128, lds=Vtag(t))
def m0_k(t): return salu("s_add_u32", "m0", sWL, KRING + (t % NK) * TILE)
def m0_v(t): return salu("s_add_u32", "m0", sWL, VRING + (t % NV) * TILE)
def dma_k(t, j): return dma(f"v{DV[j]}", SK, sKV, 1024 * j, lds=Ktag(t))
def dma_v(t, j): return dma(f"v{DV[j]}", SVV, sKV, 1024 * j, lds=Vtag(t))
def adv(): return salu("s_add_u32", sKV, sKV, TILE)

def maxops(x):
    res = []
    for qb in range(2):
        s = P(x, qb); m = f"v{NM(x,qb)}"; t = f"v{T[8+qb]}"
        res.append([
            valu("v_max3_f32", m, f"v{s}", f"v{s+1}", f"v{s+2}"),
            valu("v_max3_f32", t, f"v{s+3}", f"v{s+4}", f"v{s+5}"),
            valu("v_max3_f32", m, m, f"v{s+6}", f"v{s+7}"),
            valu("v_max_f32", m, m, t),
            valu("v_mov_b32", t, m),
            swap("v_permlane16_swap_b32", m, t),
            valu("v_max_f32", m, m, t),
            valu("v_mov_b32", t, m),
            swap("v_permlane32_swap_b32", m, t),
            valu("v_max_f32", m, m, t),
            valu("v_mul_f32_e64", m, m, "-" + sC),
        ])
    return res

def interleave(*ls):
    out = []; n = max(len(l) for l in ls)
    for i in range(n):
        for l in ls:
            if i < len(l): out.append(l[i])
    return out

def epi_head(blk, x):
    res = []
    for qb in range(2):
        l = f"v{L(x,qb)}"; r = f"v{T[2*x+qb]}"; t = f"v{T[4+2*x+qb]}"
        fl = FLAG(blk, x, qb)
        res.append([
            valu("v_mov_b32", t, l),
            valu("v_mov_b32", r, l),
            swap("v_permlane16_swap_b32", r, t),
            valu("v_add_f32", r, r, t),
            valu("v_mov_b32", t, r),
            swap("v_permlane32_swap_b32", r, t),
            valu("v_add_f32", r, r, t),
            valu("v_cmp_ngt_f32_e64", f"s[{fl}:{fl+1}]", sTHR, r),
            valu("v_rcp_f32", r, r),
        ])
    return interleave(*res)

def epi_unit(blk, x, qb, dp, pk, so):
    b = O(x, qb, 2 * dp); r = T[2 * x + qb]
    ops = []
    if pk:
        re_ = r & ~1
        sel = r & 1
        for i in range(4):
            ops.append(valu("v_pk_mul_f32", rr("v", b + 2 * i, 2), rr("v", b + 2 * i, 2), rr("v", re_, 2),
                            mods=f"op_sel:[0,{sel}] op_sel_hi:[1,{sel}]"))
    else:
        for i in range(8): ops.append(valu("v_mul_f32", f"v{b+i}", f"v{b+i}", f"v{r}"))
    for i in range(4): ops.append(valu("v_cvt_pk_bf16_f32", f"v{b+i}", f"v{b+2*i}", f"v{b+2*i+1}"))
    tail = [swap("v_permlane16_swap_b32", f"v{b}", f"v{b+2}"), swap("v_permlane16_swap_b32", f"v{b+1}", f"v{b+3}"),
            bstore(rr("v", b, 4), f"v{SV}", SO, so, 64 * dp)]
    return ops, tail

def epi_body(blk, x, pk, units=None):
    out = []; pend = []
    for qb in range(2):
        so = sT[2 * x + qb]
        for dp in range(6):
            if units is not None and (qb, dp) not in units: continue
            ops, tail = epi_unit(blk, x, qb, dp, pk, so)
            out += ops[:2] + pend[:2] + ops[2:4] + pend[2:] + ops[4:]
            pend = tail
    return out + pend

def epi_soff(blk, x):
    return [salu("s_add_u32", sT[2 * x + qb], sQB, blk * HEAD + x * TILE + qb * 6144) for qb in range(2)]

DMA_GAPS = [6, 11, 16, 21, 26, 31]
BAR_GAP = 4

def mfmas(t):
    m = []
    m += [qk(t, 0, n) for n in range(24)] if t < 32 else [None] * 24
    m += [pv(t - 1, 1, n) for n in range(24)] if t >= 1 else [None] * 24
    m += [qk(t, 1, n) for n in range(24)] if t < 32 else [None] * 24
    m += [pv(t, 0, n) for n in range(24)] if t < 32 else [None] * 24
    return m

def fixed(t, bar_gap=BAR_GAP, dma_gaps=DMA_GAPS):
    sc = {}; mem = {}
    need = set()
    if t < 32: need.add(Vtag(t))
    if t + 1 < 32: need.add(Ktag(t + 1))
    if t < 32:
        sc[bar_gap - 1] = wait(vm=need, lgkm=0)
        sc[bar_gap] = barrier()
    if t + NV - 1 < 32:
        sc[dma_gaps[0] - 1] = m0_v(t + NV - 1)
        for j in range(3): mem[dma_gaps[j]] = dma_v(t + NV - 1, j)
    if t + NK < 32:
        sc[dma_gaps[3] - 2] = adv()
        sc[dma_gaps[3] - 1] = m0_k(t + NK)
        for j in range(3): mem[dma_gaps[3 + j]] = dma_k(t + NK, j)
    if t < 32:
        for n in range(24): mem[36 + 3 * (n >> 1) + (n & 1)] = vread(t, n)
    if t + 1 < 32:
        for n in range(12): mem[72 + 2 * n] = kread(t + 1, n)
    return sc, mem

def btail(first):
    return [cv(1, 0, 0), cv(1, 0, 1), cv(1, 1, 0), cv(1, 1, 1)] + [a_(1, 2, r, first) for r in range(4)] + \
           [a_(1, 3, r) for r in range(4)] + [cv(1, 2, 0), cv(1, 2, 1), cv(1, 3, 0), cv(1, 3, 1)]

def steady_valu(t):
    v = {g: [] for g in range(96)}
    bt = btail(False)
    gs = [g for g in range(0, 9) if g not in DMA_GAPS]
    for i, g in enumerate(gs): v[g] = bt[2 * i:2 * i + 2]
    gs = [g for g in range(9, 36) if g not in DMA_GAPS] + [38, 41]
    i = 0
    for c in range(4):
        v[gs[i]] = [f_(0, c, 0), f_(0, c, 1)]; v[gs[i + 1]] = [f_(0, c, 2), f_(0, c, 3)]; i += 2
        for r in range(4): v[gs[i]] = [e_(0, c, r)]; i += 1
    sing = []
    for c in range(4): sing += [a_(0, c, r) for r in range(4)] + [cv(0, c, 0), cv(0, c, 1)]
    for g in range(36, 57):
        if g in (38, 41): continue
        n = 2 if (g - 36) % 3 == 2 else 1
        v[g] = sing[:n]; sing = sing[n:]
    assert not sing
    fs = [f_(1, c, r) for c in range(4) for r in range(4)] + [a_(1, 0, r) for r in range(4)] + [a_(1, 1, 0), a_(1, 1, 1)]
    sg = [57, 58, 60, 61, 63, 64, 66, 67, 69, 70] + list(range(72, 96, 2))
    for g, op in zip(sg, fs): v[g] = [op]
    eg = [59, 62, 65, 68, 71] + list(range(73, 95, 2))
    for g, op in zip(eg, [e_(1, c, r) for c in range(4) for r in range(4)]): v[g] = [op]
    v[95] = [a_(1, 1, 2), a_(1, 1, 3)]
    return v

def emit_gaps(m, sc, mem, v, extra=None):
    out = []
    for g in range(len(m)):
        if m[g] is not None: out.append(m[g])
        for d in (sc, mem):
            x = d.get(g)
            if x is None: continue
            out += x if isinstance(x, list) else [x]
        out += v.get(g, [])
        if extra and g in extra: out += extra[g]
    return out

def greedy(m, sc, mem, streams, drains):
    v = {}; pre = {}
    streams = [list(s) for s in streams]
    out = []
    for g in range(len(m)):
        for si, cnt in drains.get(g, []):
            s = streams[si]
            while s and len(s) > cnt: out.append(s.pop(0)[1])
        cap = 2
        if m[g] is not None: out.append(m[g])
        for d in (sc, mem):
            x = d.get(g)
            if x is None: continue
            x = x if isinstance(x, list) else [x]
            out += x
            if d is mem: cap -= sum(o.cost for o in x)
        prog = True
        while cap > 0 and prog:
            prog = False
            for s in streams:
                if s and s[0][0] <= g and s[0][1].cost <= cap:
                    op = s.pop(0)[1]; out.append(op); cap -= op.cost; prog = True; break
    for s in streams: assert not s, s
    return out

def at(g, ops): return [(g, o) for o in ops]

def soft_first(x, base):
    mx = maxops(x)
    s = at(base + 15, mx[0][:5]) + at(base + 16, mx[0][5:8]) + at(base + 17, mx[0][8:])
    s += at(base + 18, [f_(x, 0, r) for r in range(4)] + [e_(x, 0, r) for r in range(4)])
    s += at(base + 18, [f_(x, 1, r) for r in range(4)])
    s += at(base + 27, mx[1][:5]) + [(base + 27, e_(x, 1, 0))] + at(base + 27, mx[1][5:8]) + [(base + 27, e_(x, 1, 1))]
    s += at(base + 27, mx[1][8:]) + at(base + 27, [e_(x, 1, 2), e_(x, 1, 3)])
    for c in (2, 3): s += at(base + 27, [f_(x, c, r) for r in range(4)] + [e_(x, c, r) for r in range(4)])
    if x == 0:
        for c in range(4): s += at(base + 27, [a_(x, c, r, True) for r in range(4)] + [cv(x, c, 0), cv(x, c, 1)])
    else:
        s += at(base + 27, [a_(x, 0, r, True) for r in range(4)] + [a_(x, 1, r) for r in range(4)])
    return s

def qprime(t):
    sc = {}; ex = {}
    if 2 <= t <= 7:
        n0 = 2 * (t - 2); qb = n0 // 6
        sc[39] = salu("s_add_u32", sT[0], sQB, HEAD + qb * 6144)
        for i, g in enumerate((44, 62)):
            cc = (n0 + i) % 6
            ex[g] = [bload(rr("a", QA(1, 0, qb, cc), 4), f"v{QV}", SQ, sT[0], cc * 64)]
    if 8 <= t <= 11:
        gi = t - 8
        sc[39] = salu("s_add_u32", sT[0], sQB, HEAD + TILE + gi * 3072)
        sc[42] = salu("s_add_u32", "m0", sWS, QST + gi * 3072)
        for j, g in enumerate((44, 56, 68)):
            ex[g] = [dma(f"v{DV[j]}", SQ, sT[0], 1024 * j, lds=QBtag)]
    return sc, ex

def stamp(i):
    return [raw("s_memtime s[60:61]", "smem", wr=["s60", "s61"])]
def stamp_save(i):
    return [valu("v_writelane_b32", f"v{TS}", "s60", i)]

def step(t):
    m = mfmas(t)
    first = (t & 15) == 0
    if not first:
        sc, mem = fixed(t)
        v = steady_valu(t)
        if (t & 15) == 1:
            bt = btail(True)
            gs = [g for g in range(0, 9) if g not in DMA_GAPS]
            for i, g in enumerate(gs): v[g] = bt[2 * i:2 * i + 2]
        qs, ex = qprime(t)
        for g, o in qs.items(): assert g not in sc; sc[g] = o
        for g, o in ex.items():
            assert g not in mem; mem[g] = o
        ex = {}
        if DIAG: ex[BAR_GAP] = stamp_save(t) + stamp(t + 1)
        return [comment(f"---- step {t}")] + emit_gaps(m, sc, mem, v, ex)
    if t == 0:
        sc, mem = fixed(0, bar_gap=30, dma_gaps=[32, 33, 34, 38, 41, 44])
        if DIAG: sc[30] = [sc[30]] + stamp_save(0) + stamp(1)
        A = soft_first(0, 0); B = soft_first(1, 48)
        return [comment("---- step 0")] + greedy(m, sc, mem, [A, B], {72: [(0, 0)], 95: [(1, 0)]})
    if t == 16:
        sc, mem = fixed(16)
        if DIAG: sc[BAR_GAP] = [sc[BAR_GAP]] + stamp_save(16) + stamp(17)
        free = [g for g in range(0, 36) if g not in mem and g >= 7][:12]
        for n, g in enumerate(free):
            qb, cc = divmod(n, 6)
            mem[g] = ds_read("ds_read_b128", rr("a", QA(1, 1, qb, cc), 4), f"v{T[10+(cc&1)]}", qb * 6144 + (cc >> 1) * 128, lds=QBtag)
        bt = at(0, btail(False))
        EA = at(4, epi_soff(0, 0) + epi_head(0, 0)) + at(4, epi_body(0, 0, False, {(0, 0), (0, 1)}))
        EA2 = at(999, epi_body(0, 0, PK, {(q, d) for q in range(2) for d in range(6)} - {(0, 0), (0, 1)}))
        A = soft_first(0, 0)
        EB = at(10, epi_soff(0, 1) + epi_head(0, 1))
        EB2 = at(999, epi_body(0, 1, PK))
        B = soft_first(1, 48)
        return [comment("---- step 16")] + greedy(m, sc, mem, [bt, A, EA, EA2, EB, B, EB2],
                 {24: [(0, 0), (2, 0), (3, 0), (4, 0)], 72: [(1, 0), (6, 0)], 95: [(5, 0)]})
    if t == 32:
        m = mfmas(32)[24:48]
        out = [comment("---- tail")] + btail(False) + epi_soff(1, 0) + epi_soff(1, 1)
        first_units = {(0, 0), (0, 1)}
        EA = at(0, epi_head(1, 0) + epi_body(1, 0, False, first_units))
        EB = at(0, epi_head(1, 1))
        out += greedy(m + [None], {}, {}, [EA, EB], {24: [(0, 0), (1, 0)]})
        out += epi_body(1, 0, PK, {(q, d) for q in range(2) for d in range(6)} - first_units)
        out += epi_body(1, 1, PK)
        return out

def prologue():
    o = []
    o.append(raw("s_load_dwordx8 s[36:43], s[0:1], 0", "smem", wr=R("s", 36, 8)))
    if DIAG:
        o.append(raw("s_load_dwordx2 s[62:63], s[0:1], 40", "smem", wr=["s62", "s63"]))
        o.append(raw("s_memtime s[64:65]", "smem", wr=["s64", "s65"]))
        o.append(raw("s_memrealtime s[66:67]", "smem", wr=["s66", "s67"]))
    o.append(salu("s_cmp_ge_u32", None, "s2", 256))
    o.append(raw("s_cbranch_scc1 L_end", "branch"))
    lane, i_, g_, t0, t1, t2 = "v1", "v2", "v3", "v4", "v5", "v6"
    o.append(valu("v_lshrrev_b32", t0, 6, "v0"))
    o.append(valu("v_and_b32", lane, 63, "v0"))
    o.append(valu("v_readfirstlane_b32", sW, t0))
    o.append(valu("v_and_b32", i_, 15, lane))
    o.append(valu("v_lshrrev_b32", g_, 4, lane))
    o.append(salu("s_and_b32", "s31", "s2", 7))
    o.append(salu("s_lshr_b32", "s32", "s2", 3))
    o.append(salu("s_lshl_b32", "s31", "s31", 4))
    o.append(salu("s_lshr_b32", "s33", "s32", 1))
    o.append(salu("s_add_u32", "s31", "s31", "s33"))
    o.append(salu("s_and_b32", "s32", "s32", 1))
    o.append(salu("s_mul_i32", "s31", "s31", 2 * HEAD))
    o.append(salu("s_mul_i32", sWL, sW, 3072))
    o.append(salu("s_mul_i32", sWS, sW, TILE))
    o.append(salu("s_add_u32", sKV, "s31", sWL))
    o.append(salu("s_mul_i32", "s32", "s32", 256 * 384))
    o.append(salu("s_mul_i32", "s33", sW, 64 * 384))
    o.append(salu("s_add_u32", sQB, "s31", "s32"))
    o.append(salu("s_add_u32", sQB, sQB, "s33"))
    o.append(salu("s_mov_b32", sC, hex(CBITS)))
    o.append(salu("s_mov_b32", sTHR, hex(THR)))
    o.append(salu("s_mov_b32", "s34", "0x31756420"))
    o.append(salu("s_and_b32", "s35", sW, 1))
    o.append(salu("s_lshl_b32", "s35", "s35", 4))
    o.append(valu("v_lshlrev_b32", t2, 4, lane))
    for j in range(3):
        o.append(valu("v_add_u32", t0, 64 * j, lane))
        o.append(valu("v_mul_u32_u24", t0, 171, t0))
        o.append(valu("v_lshrrev_b32", t0, 13, t0))
        o.append(valu("v_lshl_add_u32", t0, t0, 2, "s35"))
        o.append(valu("v_bfe_u32", t0, "s34", t0, 3))
        o.append(valu("v_lshlrev_b32", t0, 4, t0))
        o.append(valu("v_xor_b32", f"v{DV[j]}", t0, t2))
    o.append(valu("v_mul_u32_u24", t1, 384, i_))
    o.append(valu("v_lshl_add_u32", f"v{QV}", g_, 4, t1))
    o.append(raw("s_waitcnt lgkmcnt(0)", "salu"))
    for base, src in ((4, 36), (8, 38), (12, 40), (16, 42)):
        o.append(salu("s_mov_b32", f"s{base}", f"s{src}"))
        o.append(salu("s_and_b32", f"s{base+1}", f"s{src+1}", "0xffff"))
        o.append(salu("s_mov_b32", f"s{base+2}", "0x3000000"))
        o.append(salu("s_mov_b32", f"s{base+3}", "0x20000"))
    def kd(t): return [m0_k(t), nop(1)] + [dma_k(t, j) for j in range(3)]
    def vd(t): return [m0_v(t), nop(1)] + [dma_v(t, j) for j in range(3)]
    def qd(x):
        r = []
        for qb in range(2):
            r.append(salu("s_add_u32", sT[qb], sQB, x * TILE + qb * 6144))
            r += [bload(rr("a", QA(0, x, qb, cc), 4), f"v{QV}", SQ, sT[qb], cc * 64) for cc in range(6)]
        return r
    o += kd(0) + qd(0) + qd(1)
    for t in range(NV - 1):
        o += vd(t) + [adv()] + kd(t + 1)
    o.append(valu("v_and_b32", t0, 1, g_))
    o.append(valu("v_lshl_add_u32", t0, t0, 5, t1))
    o.append(valu("v_lshrrev_b32", t2, 1, g_))
    o.append(valu("v_lshl_add_u32", f"v{SV}", t2, 4, t0))
    o.append(valu("v_lshrrev_b32", t0, 1, i_))
    o.append(valu("v_lshlrev_b32", t0, 2, t0))
    o.append(valu("v_bfe_u32", t0, "s34", t0, 3))
    o.append(valu("v_xor_b32", t0, t0, g_))
    o.append(valu("v_lshl_add_u32", f"v{KA[0]}", t0, 4, t1))
    o.append(valu("v_xor_b32", f"v{KA[1]}", 64, f"v{KA[0]}"))
    o.append(valu("v_bfe_u32", t0, i_, 1, 2))
    o.append(valu("v_lshl_add_u32", t0, t0, 2, "s35"))
    o.append(valu("v_bfe_u32", t0, "s34", t0, 3))
    o.append(valu("v_xor_b32", t0, t0, g_))
    o.append(valu("v_lshl_add_u32", t0, t0, 4, t1))
    o.append(salu("s_add_u32", "s33", sWS, QST))
    o.append(valu("v_add_u32", f"v{T[10]}", "s33", t0))
    o.append(valu("v_xor_b32", f"v{T[11]}", 64, f"v{T[10]}"))
    o.append(valu("v_lshrrev_b32", t0, 2, i_))
    o.append(valu("v_lshl_add_u32", t0, g_, 2, t0))
    o.append(valu("v_lshrrev_b32", t2, 1, t0))
    o.append(valu("v_lshlrev_b32", t2, 2, t2))
    o.append(valu("v_bfe_u32", t2, "s34", t2, 3))
    o.append(valu("v_mul_u32_u24", t0, 384, t0))
    o.append(valu("v_bfe_u32", t1, i_, 1, 1))
    o.append(valu("v_xor_b32", t2, t2, t1))
    o.append(valu("v_lshl_add_u32", t0, t2, 4, t0))
    o.append(valu("v_and_b32", t1, 1, i_))
    o.append(valu("v_lshl_add_u32", t0, t1, 3, t0))
    o.append(valu("v_add_u32", f"v{VA[0]}", VRING, t0))
    for k in range(1, 4): o.append(valu("v_xor_b32", f"v{VA[k]}", 32 * k, f"v{VA[0]}"))
    if DIAG: o.append(valu("v_mov_b32", f"v{TS}", 0))
    o.append(wait(vm={Ktag(0)}))
    o.append(barrier())
    o += [kread(0, n) for n in range(12)]
    if DIAG: o += stamp(0)
    return o

def slow_path():
    o = []
    segs = []
    lane, i_, g_ = f"v{T[8]}", f"v{T[9]}", f"v{T[10]}"
    lin, tra = f"v{T[11]}", f"v{VA[0]}"
    o.append(label("L_slow"))
    o.append(raw("s_waitcnt vmcnt(0) lgkmcnt(0)", "salu"))
    o.append(valu("v_mbcnt_lo_u32_b32", lane, -1, 0))
    o.append(valu("v_mbcnt_hi_u32_b32", lane, -1, lane))
    o.append(valu("v_and_b32", i_, 15, lane))
    o.append(valu("v_lshrrev_b32", g_, 4, lane))
    o.append(valu("v_lshlrev_b32", lin, 4, lane))
    o.append(valu("v_lshrrev_b32", tra, 2, i_))
    o.append(valu("v_lshl_add_u32", tra, g_, 2, tra))
    o.append(valu("v_mul_u32_u24", tra, 384, tra))
    o.append(valu("v_and_b32", i_, 3, i_))
    o.append(valu("v_lshl_add_u32", tra, i_, 3, tra))
    o.append(salu("s_add_u32", "s69", sWS, QST))
    o.append(valu("v_add_u32", tra, "s69", tra))
    o.append(salu("s_mov_b32", "s68", 0))
    o.append(label("L_slow_combo"))
    o.append(salu("s_bitcmp1_b32", None, "s70", "s68"))
    o.append(raw("s_cbranch_scc0 L_slow_next", "branch"))
    o.append(salu("s_lshr_b32", "s71", "s68", 1))
    o.append(salu("s_and_b32", "s72", "s68", 1))
    o.append(salu("s_mul_i32", "s71", "s71", HEAD))
    o.append(salu("s_mul_i32", "s72", "s72", TILE))
    o.append(salu("s_add_u32", sT[0], sQB, "s71"))
    o.append(salu("s_add_u32", sT[0], sT[0], "s72"))
    o.append(salu("s_add_u32", sT[1], sT[0], 6144))
    o.append(salu("s_add_u32", "s73", "s31", "s71"))
    for qb in range(2):
        o += [bload(rr("a", QA(0, 0, qb, cc), 4), f"v{QV}", SQ, sT[qb], cc * 64) for cc in range(6)]
        o.append(valu("v_mov_b32", f"v{NM(0,qb)}", "0xff800000"))
        o.append(valu("v_mov_b32", f"v{L(0,qb)}", 0))
    for r in range(96): o.append(valu("v_mov_b32", f"v{r}", 0))
    o.append(raw("s_waitcnt vmcnt(0)", "salu"))
    o.append(salu("s_mov_b32", "s74", 0))
    o.append(label("L_slow_pass"))
    o.append(salu("s_mov_b32", "s75", "s73"))
    o.append(salu("s_add_u32", "s76", "s73", HEAD))
    o.append(label("L_slow_tile"))
    o.append(salu("s_add_u32", "s77", "s75", 6144))
    for kb in range(2):
        o += [bload(rr("a", KF(kb, cc), 4), f"v{QV}", SK, ("s75", "s77")[kb], cc * 64) for cc in range(6)]
    o.append(salu("s_mov_b32", "m0", "s69"))
    o.append(salu("s_mov_b32", "s77", "s75"))
    for k in range(3):
        o += [dma(lin, SVV, "s77", 1024 * j) for j in range(4)]
        if k < 2:
            o.append(salu("s_add_u32", "m0", "m0", 4096))
            o.append(salu("s_add_u32", "s77", "s77", 4096))
    o.append(raw("s_waitcnt vmcnt(0)", "salu"))
    o += [qk(0, 0, n) for n in range(24)]
    o.append(nop(8))
    o.append(salu("s_cmp_eq_u32", None, "s74", 0))
    o.append(raw("s_cbranch_scc0 L_slow_p2", "branch"))
    for qb in range(2):
        for r in range(0, 8, 2):
            o.append(valu("v_max3_f32", f"v{NM(0,qb)}", f"v{NM(0,qb)}", f"v{P(0,qb)+r}", f"v{P(0,qb)+r+1}"))
    o.append(raw("s_branch L_slow_tile_end", "branch"))
    o.append(label("L_slow_p2"))
    for n in range(24):
        db, h = divmod(n, 2)
        o.append(ds_read("ds_read_b64_tr_b16", rr("a", VF(db) + 2 * h, 2), tra, h * 6144 + db * 32))
        if n == 11: o.append(raw("s_waitcnt lgkmcnt(0)", "salu"))
    for c in range(4): o += [f_(0, c, r) for r in range(4)]
    for c in range(4): o += [e_(0, c, r) for r in range(4)]
    o.append(nop(1))
    for c in range(4): o += [a_(0, c, r) for r in range(4)]
    for c in range(4): o += [cv(0, c, 0), cv(0, c, 1)]
    o.append(raw("s_waitcnt lgkmcnt(0)", "salu"))
    o.append(nop(2))
    o += [pv(1, 0, n) for n in range(24)]
    o.append(label("L_slow_tile_end"))
    o.append(nop(8))
    o.append(salu("s_add_u32", "s75", "s75", TILE))
    o.append(salu("s_cmp_lt_u32", None, "s75", "s76"))
    o.append(raw("s_cbranch_scc1 L_slow_tile", "branch"))
    o.append(salu("s_cmp_eq_u32", None, "s74", 0))
    o.append(raw("s_cbranch_scc0 L_slow_fin", "branch"))
    mx = maxops(0)
    for qb in range(2): o += mx[qb][4:]
    o.append(salu("s_mov_b32", "s74", 1))
    o.append(raw("s_branch L_slow_pass", "branch"))
    o.append(label("L_slow_fin"))
    o += epi_head(0, 0) + epi_body(0, 0, False)
    o.append(raw("s_waitcnt vmcnt(0)", "salu"))
    o.append(label("L_slow_next"))
    o.append(salu("s_add_u32", "s68", "s68", 1))
    o.append(salu("s_cmp_lt_u32", None, "s68", 4))
    o.append(raw("s_cbranch_scc1 L_slow_combo", "branch"))
    o.append(raw("s_endpgm", "branch"))
    return o

def finish():
    o = []
    if DIAG:
        o.append(raw("s_waitcnt lgkmcnt(0)", "salu"))
        o += stamp_save(32)
        o.append(raw("s_memtime s[60:61]", "smem"))
        o.append(raw("s_waitcnt lgkmcnt(0)", "salu"))
        o += stamp_save(33)
        o.append(raw("s_waitcnt vmcnt(0)", "salu"))
        o.append(raw("s_memtime s[60:61]", "smem"))
        o.append(raw("s_memrealtime s[78:79]", "smem"))
        o.append(raw("s_waitcnt lgkmcnt(0)", "salu"))
        o += stamp_save(34)
        o.append(valu("v_writelane_b32", f"v{TS}", "s64", 40))
        o.append(valu("v_writelane_b32", f"v{TS}", "s66", 41))
        o.append(valu("v_writelane_b32", f"v{TS}", "s78", 42))
        o.append(salu("s_mov_b32", "s80", "s62"))
        o.append(salu("s_and_b32", "s81", "s63", "0xffff"))
        o.append(salu("s_mov_b32", "s82", "0x10000000"))
        o.append(salu("s_mov_b32", "s83", "0x20000"))
        o.append(salu("s_lshl_b32", "s84", "s2", 2))
        o.append(salu("s_add_u32", "s84", "s84", sW))
        o.append(salu("s_lshl_b32", "s84", "s84", 8))
        o.append(valu("v_mbcnt_lo_u32_b32", f"v{T[8]}", -1, 0))
        o.append(valu("v_mbcnt_hi_u32_b32", f"v{T[8]}", -1, f"v{T[8]}"))
        o.append(valu("v_lshlrev_b32", f"v{T[8]}", 2, f"v{T[8]}"))
        o.append(bstore(f"v{TS}", f"v{T[8]}", "s[80:83]", "s84", 0, op="buffer_store_dword"))
    o.append(salu("s_mov_b32", "s70", 15 if FORCE_SLOW else 0))
    for combo in range(4):
        f0 = FLAG(combo >> 1, combo & 1, 0)
        o.append(salu("s_or_b64", "s[72:73]", f"s[{f0}:{f0+1}]", f"s[{f0+2}:{f0+3}]"))
        o.append(salu("s_cselect_b32", "s71", 1 << combo, 0))
        o.append(salu("s_or_b32", "s70", "s70", "s71"))
    o.append(raw("s_cbranch_scc1 L_slow", "branch"))
    o.append(label("L_end"))
    o.append(raw("s_endpgm", "branch"))
    return o

def build():
    tr = prologue()
    for t in range(33): tr += step(t)
    tr += finish()
    tr = insert_waits(tr)
    tr, added = fix_hazards(tr)
    errs, issued = verify(tr, private=lambda tag: tag == QBtag)
    for e in errs[:30]: print("ERR", e)
    assert not errs
    assert all(v == (12 if k == QBtag else 3) for k, v in issued.items()) and len(issued) == 65, issued
    cur = "pro"; seg = {}
    for ins in tr:
        if ins.t.startswith("; ----"): cur = ins.t[7:]
        seg.setdefault(cur, []).append(ins)
    tot = 0
    for k, s in seg.items():
        c = est_cycles(s); tot += c
        if k in ("pro", "step 0", "step 1", "step 2", "step 8", "step 15", "step 16", "step 17", "step 18", "step 31", "tail"):
            print(f"{k:8s} instrs {len(s):4d} est cycles {c:5d} nops {sum(1 for i in s if i.k=='nop')} waits {sum(1 for i in s if i.k=='wait')}")
    print("total est cycles", tot)
    sp, _ = fix_hazards(slow_path())
    return tr + sp

HDR = open("standalone__mha_softmax__near_ridge.s.ref").read().split("; @launch")[0]
def main():
    tr = build()
    o = [HDR + f"; @launch grid=(256,1,1) block=(256,1,1) lds={LDS_BYTES}",
         '.amdgcn_target "amdgcn-amd-amdhsa--gfx950"', ".text", f".globl {KN}", ".p2align 8",
         f".type {KN},@function", f"{KN}:"]
    for ins in tr: o.append(ins.t if ins.k == "label" else "  " + ins.t)
    o.append(f'''.section .rodata,"a"
.p2align 6
.amdhsa_kernel {KN}
  .amdhsa_next_free_vgpr 512
  .amdhsa_next_free_sgpr 102
  .amdhsa_accum_offset 256
  .amdhsa_group_segment_fixed_size 0
  .amdhsa_kernarg_size 48
  .amdhsa_user_sgpr_count 2
  .amdhsa_user_sgpr_kernarg_segment_ptr 1
  .amdhsa_system_sgpr_workgroup_id_x 1
.end_amdhsa_kernel''')
    open(sys.argv[1], "w").write("\n".join(o) + "\n")
main()
```

```python
import re

def R(f, a, n=1):
    return [f"{f}{a+i}" for i in range(n)]

def rr(f, a, n=1):
    return f"{f}{a}" if n == 1 else f"{f}[{a}:{a+n-1}]"

class I:
    __slots__ = ("t", "k", "rd", "wr", "srcc", "tag", "need", "cost", "note", "lds_rd", "lds_wr", "stdata", "auto")
    def __init__(s, t, k, rd=(), wr=(), srcc=(), tag=None, need=None, cost=1, lds_rd=None, lds_wr=None, stdata=()):
        s.t = t; s.k = k; s.rd = set(rd); s.wr = set(wr); s.srcc = set(srcc); s.tag = tag
        s.need = need; s.cost = cost; s.note = ""; s.lds_rd = lds_rd; s.lds_wr = lds_wr
        s.stdata = set(stdata); s.auto = False
    def __repr__(s): return s.t

def regs_of(op):
    m = re.fullmatch(r"([vas])(\d+)", op)
    if m: return [op]
    m = re.fullmatch(r"([vas])\[(\d+):(\d+)\]", op)
    if m: return [f"{m.group(1)}{i}" for i in range(int(m.group(2)), int(m.group(3)) + 1)]
    if op in ("vcc", "m0", "exec", "scc"): return [op]
    if op.startswith("-") or op.startswith("|"): return regs_of(op.strip("-|"))
    return []

TRANS = ("v_exp_f32", "v_rcp_f32", "v_log_f32", "v_rsq_f32")

def valu(op, dst, *src, mods="", rdw=False):
    t = f"{op} {dst}, " + ", ".join(str(x) for x in src) + (" " + mods if mods else "")
    rd = [r for x in src for r in regs_of(str(x))]
    wr = regs_of(dst)
    if rdw: rd += wr
    k = "trans" if op in TRANS else "valu"
    return I(t, k, rd, wr, cost=2 if k == "trans" else 1)

def swap(op, a, b):
    return I(f"{op} {a}, {b}", "perm", [a, b], [a, b])

def salu(op, dst, *src, scc=True):
    t = f"{op} " + ", ".join(([dst] if dst else []) + [str(x) for x in src])
    rd = [r for x in src for r in regs_of(str(x))]
    wr = regs_of(dst) if dst else []
    return I(t, "salu", rd, wr)

def mfma(d, a, b, c):
    t = f"v_mfma_f32_16x16x32_bf16 {d}, {a}, {b}, {c}"
    cr = regs_of(str(c))
    return I(t, "mfma", regs_of(a) + regs_of(b) + cr, regs_of(d), srcc=cr, cost=2)

def ds_read(op, dst, addr, off, lds=None):
    assert 0 <= off < 65536, off
    return I(f"{op} {dst}, {addr} offset:{off}", "ds", regs_of(addr), regs_of(dst), lds_rd=lds)

def ds_write(op, addr, src, off):
    assert 0 <= off < 65536, off
    return I(f"{op} {addr}, {src} offset:{off}", "ds", regs_of(addr) + regs_of(src), [], stdata=regs_of(src))

def dma(voff, srd, soff, off, lds=None, mods=""):
    assert 0 <= off < 4096
    o = f" offset:{off}" if off else ""
    return I(f"buffer_load_dwordx4 {voff}, {srd}, {soff} offen{o}{mods} lds", "dma",
             regs_of(voff) + regs_of(srd) + regs_of(soff) + ["m0"], [], cost=2, lds_wr=lds)

def bload(dst, voff, srd, soff, off, mods="", op="buffer_load_dwordx4"):
    assert 0 <= off < 4096
    o = f" offset:{off}" if off else ""
    return I(f"{op} {dst}, {voff}, {srd}, {soff} offen{o}{mods}", "vld",
             regs_of(voff) + regs_of(srd) + regs_of(soff), regs_of(dst), cost=2)

def bstore(src, voff, srd, soff, off, mods="", op="buffer_store_dwordx4"):
    assert 0 <= off < 4096
    o = f" offset:{off}" if off else ""
    return I(f"{op} {src}, {voff}, {srd}, {soff} offen{o}{mods}", "vst",
             regs_of(src) + regs_of(voff) + regs_of(srd) + regs_of(soff), [], cost=2, stdata=regs_of(src))

def wait(vm=None, lgkm=None):
    return I("s_waitcnt", "wait", need=[vm, lgkm])

def barrier(): return I("s_barrier", "barrier")
def nop(n): return I(f"s_nop {n-1}", "nop", cost=n)
def label(n): return I(f"{n}:", "label", cost=0)
def raw(t, k="salu", rd=(), wr=()): return I(t, k, rd, wr)
def comment(t): return I(f"; {t}", "label", cost=0)

VMK = ("dma", "vld", "vst")
SCALAR = ("salu", "wait", "barrier", "nop", "smem", "branch")

def states(i):
    if i.k == "label": return 0
    if i.k == "nop": return i.cost
    return 1

def insert_waits(tr, ds_age=20, vm_age=None):
    out = []
    dsq = []
    vmq = []
    def cover(q, n):
        del q[:max(0, len(q) - n)]
    for ins in tr:
        if ins.k == "wait":
            vm, lg = ins.need
            if isinstance(vm, (set, frozenset)):
                idx = [j for j, o in enumerate(vmq) if o.lds_wr in vm or o.tag in vm]
                vm = (len(vmq) - 1 - max(idx)) if idx else None
            if isinstance(lg, (set, frozenset)):
                idx = [j for j, o in enumerate(dsq) if o.lds_rd in lg or o.tag in lg]
                lg = (len(dsq) - 1 - max(idx)) if idx else None
            if vm is not None: vm = min(vm, 63)
            if lg is not None: lg = min(lg, 15)
            ins.need = [vm, lg]
            if vm is not None: cover(vmq, vm)
            if lg is not None: cover(dsq, lg)
            out.append(ins); continue
        touched = ins.rd | ins.wr
        for q, which, mx, age in ((dsq, 1, 15, ds_age), (vmq, 0, 63, vm_age)):
            idx = [j for j, o in enumerate(q) if o.wr & touched]
            if not idx: continue
            y = max(idx)
            pos = len(out); p = len(out) - 1
            while p >= 0 and out[p].k != "mfma" and out[p].k != "barrier" and out[p].k != "branch" and not (out[p].k == "label" and not out[p].t.startswith(";")): p -= 1
            merged = None
            if p >= 0 and out[p].k == "mfma" and ins.k == "mfma":
                ipos = {id(o): n for n, o in enumerate(out[p:], p)}
                if id(q[y]) not in ipos:
                    nx = out[p + 1] if p + 1 < len(out) else None
                    if nx is not None and nx.k == "wait" and nx.need[which] is None: merged = nx; pos = p + 1
                    elif nx is not None and nx.k == "wait" and nx.auto: merged = nx; pos = p + 1
                    elif nx is None or nx.k not in SCALAR: pos = p + 1
            after = set(id(o) for o in out[pos:])
            before = [o for o in q if id(o) not in after]
            if age is not None:
                where = {id(o): n for n, o in enumerate(out[max(0, pos - 400):pos], max(0, pos - 400))}
                for j in range(y + 1, len(before)):
                    if pos - where.get(id(before[j]), -10**9) >= age: y = j
            n = min(len(before) - 1 - y, mx)
            if merged is not None:
                old = merged.need[which]
                merged.need[which] = n if old is None else min(old, n)
            else:
                w = wait(); w.need = [None, None]; w.need[which] = n; w.auto = True
                out.insert(pos, w)
            done = len(before) - n
            del q[:max(0, done)]
        out.append(ins)
        if ins.k == "ds": dsq.append(ins)
        if ins.k in VMK: vmq.append(ins)
    res = []
    for ins in out:
        if ins.k == "wait":
            vm, lg = ins.need
            if vm is None and lg is None: continue
            ins.t = "s_waitcnt" + (f" vmcnt({vm})" if vm is not None else "") + (f" lgkmcnt({lg})" if lg is not None else "")
        res.append(ins)
    return res

def required(p, c):
    n = 0
    isv = lambda x: x.k in ("valu", "trans", "perm")
    if isv(p):
        vw = {r for r in p.wr if r[0] in "va" and r != "vcc"}
        sw = {r for r in p.wr if r[0] == "s" or r == "vcc"}
        if c.k == "mfma" and vw & c.rd: n = max(n, 2)
        if c.k == "perm" and vw & c.rd: n = max(n, 2)
        if p.k == "trans" and isv(c) and c.k != "trans" and vw & c.rd: n = max(n, 1)
        if p.k == "trans" and c.k in VMK + ("ds",) and vw & c.rd: n = max(n, 1)
        if ("readfirstlane" in c.t or "readlane" in c.t) and vw & c.rd: n = max(n, 1)
        if "dpp" in c.t and vw & c.rd: n = max(n, 2)
        if isv(c) and sw & c.rd: n = max(n, 4 if "lane" in c.t else 2)
        if c.k in VMK and sw & c.rd: n = max(n, 5)
        if c.k in ("salu", "branch") and sw & c.rd: n = max(n, 1)
    if p.k == "mfma":
        if c.k == "mfma":
            if p.wr & (c.rd - c.srcc): n = max(n, 8)
            if p.wr & c.srcc and p.wr != c.srcc: n = max(n, 6)
            if p.wr & c.srcc and (p.wr & (c.rd - c.srcc)): n = max(n, 8)
        elif isv(c) or c.k in VMK + ("ds",):
            if p.wr & (c.rd | c.wr): n = max(n, 8)
        if isv(c) and p.srcc & c.wr: n = max(n, 3)
        if c.k in ("ds", "vld") and p.srcc & c.wr: n = max(n, 3)
    if p.k == "ds" and p.stdata & c.wr: n = max(n, 2)
    if p.k == "vst" and len(p.stdata) >= 3:
        if p.stdata & c.wr: n = max(n, 2)
    if p.k == "salu" and "m0" in p.wr and c.k == "dma": n = max(n, 1)
    return n

def fix_hazards(tr, verbose=True):
    out = []; added = []
    for ins in tr:
        if ins.k != "label":
            need = 0; d = 0
            for p in reversed(out[-40:]):
                r = required(p, ins)
                if r > d: need = max(need, r - d)
                d += states(p)
                if d >= 12: break
            if need:
                out.append(nop(need)); added.append((len(out), need, ins.t))
        out.append(ins)
    return out, added

def verify(tr, private=lambda tag: False, alias={}):
    dsq = []; vmq = []
    landed_own = set(); visible = set()
    issued = {}
    region_of = {}
    region_content = {}
    reads_open = {}
    errs = []
    for n, ins in enumerate(tr):
        if ins.k == "wait":
            vm, lg = ins.need
            if vm is not None: del vmq[:max(0, len(vmq) - vm)]
            if lg is not None: del dsq[:max(0, len(dsq) - lg)]
            continue
        if ins.k == "barrier":
            pend = {o.lds_wr for o in vmq if o.lds_wr}
            for tag in issued:
                if tag not in pend: visible.add(tag)
            pr = {o.lds_rd[1] for o in dsq if o.lds_rd}
            for r_ in list(pr): pr |= set(alias.get(r_, []))
            for reg in list(reads_open):
                if reg not in pr: reads_open[reg] = False
            continue
        touched = ins.rd | ins.wr
        for q in (dsq, vmq):
            for o in q:
                if o.wr & touched: errs.append(f"{n}: {ins.t} touches pending result of {o.t}")
        if ins.k == "ds" and ins.lds_rd:
            tag = ins.lds_rd; reg = tag[1]
            if region_content.get(reg) != tag: errs.append(f"{n}: {ins.t} reads {tag} but region holds {region_content.get(reg)}")
            if private(tag):
                if any(o.lds_wr == tag for o in vmq): errs.append(f"{n}: {ins.t} private tile {tag} not landed")
            elif tag not in visible: errs.append(f"{n}: {ins.t} reads {tag} before visible")
            reads_open[reg] = True
            for r_ in alias.get(reg, []): reads_open[r_] = True
        if ins.k == "dma" and ins.lds_wr:
            tag = ins.lds_wr; reg = tag[1]
            if region_content.get(reg) != tag:
                if private(tag):
                    if any(o.lds_rd and o.lds_rd[1] == reg for o in dsq): errs.append(f"{n}: dma {tag} WAR (private)")
                elif reads_open.get(reg): errs.append(f"{n}: dma {tag} into region with unfenced reads")
                region_content[reg] = tag
            if tag in visible: errs.append(f"{n}: dma piece of {tag} after it was declared visible")
            issued[tag] = issued.get(tag, 0) + 1
        if ins.k == "ds": dsq.append(ins)
        if ins.k in VMK: vmq.append(ins)
        if len(vmq) > 63: errs.append(f"{n}: vmcnt overflow")
    for n, ins in enumerate(tr):
        if ins.k == "label": continue
        d = 0
        for p in reversed(tr[max(0, n - 40):n]):
            if required(p, ins) > d: errs.append(f"{n}: hazard {p.t} -> {ins.t}")
            d += states(p)
            if d >= 12: break
    return errs, issued

def est_cycles(tr):
    cyc = 0; i = 0; gap = None
    for n, ins in enumerate(tr):
        if ins.k == "label": continue
        if ins.k == "mfma":
            if gap is not None: cyc += max(16, 8 + 4 * gap)
            gap = 0; first = True; prev = ins; continue
        c = ins.cost
        if gap is None: cyc += 4 * c; continue
        if first and ins.k in SCALAR and c == 1: c = 0
        elif ins.k == "ds" and prev.k in ("valu", "trans", "perm"): c += 2
        first = False; gap += c; prev = ins
    if gap is not None: cyc += max(16, 8 + 4 * gap)
    return cyc
```

```python
import sys, struct, math
sys.path.insert(0, "gen")
from fw import *

OPT = dict(x.split("=") for x in sys.argv[2:])
DIAG = int(OPT.get("diag", 0))
FORCE_SLOW = int(OPT.get("force_slow", 0))
PK = int(OPT.get("pk", 1))
def _m(k): return "".join(" " + x for x in OPT.get(k, "").split("+") if x)
LM = _m("lm"); QM = _m("qm"); SM = _m("sm")
KN = "standalone__mha_softmax__near_ridge_kernel"

TILE = 12288; HEAD = 196608
NK = 4; NV = 4
KRING = 0; VRING = NK * TILE; QST = VRING + NV * TILE
LDS_BYTES = QST + 4 * TILE

def O(x, qb, db): return x * 96 + qb * 48 + db * 4
def S(x, c): return 192 + x * 16 + c * 4
def P(x, qb): return 192 + x * 16 + qb * 8
def L(x, qb): return 224 + 2 * x + qb
def NM(x, qb): return 228 + 2 * x + qb
KA = [232, 233]; VA = [234, 235, 236, 237]; DV = [238, 239, 240]
QV = 241; SV = 242
T = list(range(243, 255))
TS = 255
def QA(blk, x, qb, cc):
    base = 192 if (blk == 1 and x == 0) else x * 48
    return base + qb * 24 + cc * 4
def KF(kb, cc): return 96 + kb * 24 + cc * 4
def VF(db): return 144 + db * 4
SQ, SK, SVV, SO = "s[4:7]", "s[8:11]", "s[12:15]", "s[16:19]"
sKV, sWL, sC, sQB, sW, sTHR, sWS = "s20", "s21", "s22", "s23", "s29", "s28", "s30"
sT = ["s24", "s25", "s26", "s27"]
def FLAG(blk, x, qb): return 44 + 2 * (4 * blk + 2 * x + qb)
CBITS = struct.unpack("<I", struct.pack("<f", 192 ** -0.5 * math.log2(math.e)))[0]
THR = 0x4b800000

def Ktag(t): return (f"K{t}", ("K", t % NK))
def Vtag(t): return (f"V{t}", ("V", t % NV))
QBtag = ("QB", ("QB", 0))

def qk(t, x, n):
    c, cc = divmod(n, 6); qb, kb = divmod(c, 2)
    d = rr("v", S(x, c), 4)
    return mfma(d, rr("a", KF(kb, cc), 4), rr("a", QA(t >> 4, x, qb, cc), 4), d if cc else 0)
def pv(t, x, n):
    qb, db = divmod(n, 12)
    d = rr("v", O(x, qb, db), 4)
    return mfma(d, rr("a", VF(db), 4), rr("v", P(x, qb), 4), d if (t & 15) else 0)
def f_(x, c, r): return valu("v_fma_f32", f"v{S(x,c)+r}", f"v{S(x,c)+r}", sC, f"v{NM(x,c>>1)}")
def e_(x, c, r): return valu("v_exp_f32", f"v{S(x,c)+r}", f"v{S(x,c)+r}")
def a_(x, c, r, first=False):
    l = f"v{L(x,c>>1)}"
    if first and (c & 1) == 0 and r == 0: return valu("v_mov_b32", l, f"v{S(x,c)+r}")
    return valu("v_add_f32", l, l, f"v{S(x,c)+r}")
def cv(x, c, h):
    qb, kb = divmod(c, 2)
    return valu("v_cvt_pk_bf16_f32", f"v{P(x,qb)+2*kb+h}", f"v{S(x,c)+2*h}", f"v{S(x,c)+2*h+1}")
def kread(t, n):
    kb, cc = divmod(n, 6)
    return ds_read("ds_read_b128", rr("a", KF(kb, cc), 4), f"v{KA[cc&1]}", KRING + (t % NK) * TILE + kb * 6144 + (cc >> 1) * 128, lds=Ktag(t))
def vread(t, n):
    db, h = divmod(n, 2)
    return ds_read("ds_read_b64_tr_b16", rr("a", VF(db) + 2 * h, 2), f"v{VA[db&3]}", (t % NV) * TILE + h * 6144 + (db >> 2) * 128, lds=Vtag(t))
def m0_k(t): return salu("s_add_u32", "m0", sWL, KRING + (t % NK) * TILE)
def m0_v(t): return salu("s_add_u32", "m0", sWL, VRING + (t % NV) * TILE)
def dma_k(t, j): return dma(f"v{DV[j]}", SK, sKV, 1024 * j, lds=Ktag(t), mods=LM)
def dma_v(t, j): return dma(f"v{DV[j]}", SVV, sKV, 1024 * j, lds=Vtag(t), mods=LM)
def adv(): return salu("s_add_u32", sKV, sKV, TILE)

def maxops(x):
    res = []
    for qb in range(2):
        s = P(x, qb); m = f"v{NM(x,qb)}"; t = f"v{T[8+qb]}"
        res.append([
            valu("v_max3_f32", m, f"v{s}", f"v{s+1}", f"v{s+2}"),
            valu("v_max3_f32", t, f"v{s+3}", f"v{s+4}", f"v{s+5}"),
            valu("v_max3_f32", m, m, f"v{s+6}", f"v{s+7}"),
            valu("v_max_f32", m, m, t),
            valu("v_mov_b32", t, m),
            swap("v_permlane16_swap_b32", m, t),
            valu("v_max_f32", m, m, t),
            valu("v_mov_b32", t, m),
            swap("v_permlane32_swap_b32", m, t),
            valu("v_max_f32", m, m, t),
            valu("v_mul_f32_e64", m, m, "-" + sC),
        ])
    return res

def interleave(*ls):
    out = []; n = max(len(l) for l in ls)
    for i in range(n):
        for l in ls:
            if i < len(l): out.append(l[i])
    return out

def epi_head(blk, x):
    res = []
    for qb in range(2):
        l = f"v{L(x,qb)}"; r = f"v{T[2*x+qb]}"; t = f"v{T[4+2*x+qb]}"
        fl = FLAG(blk, x, qb)
        res.append([
            valu("v_mov_b32", t, l),
            valu("v_mov_b32", r, l),
            swap("v_permlane16_swap_b32", r, t),
            valu("v_add_f32", r, r, t),
            valu("v_mov_b32", t, r),
            swap("v_permlane32_swap_b32", r, t),
            valu("v_add_f32", r, r, t),
            valu("v_cmp_ngt_f32_e64", f"s[{fl}:{fl+1}]", sTHR, r),
            valu("v_rcp_f32", r, r),
        ])
    return interleave(*res)

def epi_unit(blk, x, qb, dp, pk, so):
    b = O(x, qb, 2 * dp); r = T[2 * x + qb]
    ops = []
    if pk:
        re_ = r & ~1
        sel = r & 1
        for i in range(4):
            ops.append(valu("v_pk_mul_f32", rr("v", b + 2 * i, 2), rr("v", b + 2 * i, 2), rr("v", re_, 2),
                            mods=f"op_sel:[0,{sel}] op_sel_hi:[1,{sel}]"))
    else:
        for i in range(8): ops.append(valu("v_mul_f32", f"v{b+i}", f"v{b+i}", f"v{r}"))
    for i in range(4): ops.append(valu("v_cvt_pk_bf16_f32", f"v{b+i}", f"v{b+2*i}", f"v{b+2*i+1}"))
    tail = [swap("v_permlane16_swap_b32", f"v{b}", f"v{b+2}"), swap("v_permlane16_swap_b32", f"v{b+1}", f"v{b+3}"),
            bstore(rr("v", b, 4), f"v{SV}", SO, so, 64 * dp, mods=SM)]
    return ops, tail

def epi_body(blk, x, pk, units=None):
    out = []; pend = []
    for qb in range(2):
        so = sT[2 * x + qb]
        for dp in range(6):
            if units is not None and (qb, dp) not in units: continue
            ops, tail = epi_unit(blk, x, qb, dp, pk, so)
            out += ops[:2] + pend[:2] + ops[2:4] + pend[2:] + ops[4:]
            pend = tail
    return out + pend

def epi_soff(blk, x):
    return [salu("s_add_u32", sT[2 * x + qb], sQB, blk * HEAD + x * TILE + qb * 6144) for qb in range(2)]

DMA_GAPS = [6, 11, 16, 21, 26, 31]
BAR_GAP = 4

def mfmas(t):
    m = []
    m += [qk(t, 0, n) for n in range(24)] if t < 32 else [None] * 24
    m += [pv(t - 1, 1, n) for n in range(24)] if t >= 1 else [None] * 24
    m += [qk(t, 1, n) for n in range(24)] if t < 32 else [None] * 24
    m += [pv(t, 0, n) for n in range(24)] if t < 32 else [None] * 24
    return m

def fixed(t, bar_gap=BAR_GAP, dma_gaps=DMA_GAPS):
    sc = {}; mem = {}
    need = set()
    if t < 32: need.add(Vtag(t))
    if t + 1 < 32: need.add(Ktag(t + 1))
    if t < 32:
        sc[bar_gap - 1] = wait(vm=need, lgkm=0)
        sc[bar_gap] = barrier()
    if t + NV - 1 < 32:
        sc[dma_gaps[0] - 1] = m0_v(t + NV - 1)
        for j in range(3): mem[dma_gaps[j]] = dma_v(t + NV - 1, j)
    if t + NK < 32:
        sc[dma_gaps[3] - 2] = adv()
        sc[dma_gaps[3] - 1] = m0_k(t + NK)
        for j in range(3): mem[dma_gaps[3 + j]] = dma_k(t + NK, j)
    if t < 32:
        for n in range(24): mem[36 + 3 * (n >> 1) + (n & 1)] = vread(t, n)
    if t + 1 < 32:
        for n in range(12): mem[72 + 2 * n] = kread(t + 1, n)
    return sc, mem

def btail(first):
    return [cv(1, 0, 0), cv(1, 0, 1), cv(1, 1, 0), cv(1, 1, 1)] + [a_(1, 2, r, first) for r in range(4)] + \
           [a_(1, 3, r) for r in range(4)] + [cv(1, 2, 0), cv(1, 2, 1), cv(1, 3, 0), cv(1, 3, 1)]

def steady_valu(t):
    v = {g: [] for g in range(96)}
    bt = btail(False)
    gs = [g for g in range(0, 9) if g not in DMA_GAPS]
    for i, g in enumerate(gs): v[g] = bt[2 * i:2 * i + 2]
    gs = [g for g in range(9, 36) if g not in DMA_GAPS] + [38, 41]
    i = 0
    for c in range(4):
        v[gs[i]] = [f_(0, c, 0), f_(0, c, 1)]; v[gs[i + 1]] = [f_(0, c, 2), f_(0, c, 3)]; i += 2
        for r in range(4): v[gs[i]] = [e_(0, c, r)]; i += 1
    sing = []
    for c in range(4): sing += [a_(0, c, r) for r in range(4)] + [cv(0, c, 0), cv(0, c, 1)]
    for g in range(36, 57):
        if g in (38, 41): continue
        n = 2 if (g - 36) % 3 == 2 else 1
        v[g] = sing[:n]; sing = sing[n:]
    assert not sing
    fs = [f_(1, c, r) for c in range(4) for r in range(4)] + [a_(1, 0, r) for r in range(4)] + [a_(1, 1, 0), a_(1, 1, 1)]
    sg = [57, 58, 60, 61, 63, 64, 66, 67, 69, 70] + list(range(72, 96, 2))
    for g, op in zip(sg, fs): v[g] = [op]
    eg = [59, 62, 65, 68, 71] + list(range(73, 95, 2))
    for g, op in zip(eg, [e_(1, c, r) for c in range(4) for r in range(4)]): v[g] = [op]
    v[95] = [a_(1, 1, 2), a_(1, 1, 3)]
    return v

def emit_gaps(m, sc, mem, v, extra=None):
    out = []
    for g in range(len(m)):
        if m[g] is not None: out.append(m[g])
        for d in (sc, mem):
            x = d.get(g)
            if x is None: continue
            out += x if isinstance(x, list) else [x]
        out += v.get(g, [])
        if extra and g in extra: out += extra[g]
    return out

def greedy(m, sc, mem, streams, drains):
    v = {}; pre = {}
    streams = [list(s) for s in streams]
    out = []
    for g in range(len(m)):
        for si, cnt in drains.get(g, []):
            s = streams[si]
            while s and len(s) > cnt: out.append(s.pop(0)[1])
        cap = 2
        if m[g] is not None: out.append(m[g])
        for d in (sc, mem):
            x = d.get(g)
            if x is None: continue
            x = x if isinstance(x, list) else [x]
            out += x
            if d is mem: cap -= sum(o.cost for o in x)
        prog = True
        while cap > 0 and prog:
            prog = False
            for s in streams:
                if s and s[0][0] <= g and s[0][1].cost <= cap:
                    op = s.pop(0)[1]; out.append(op); cap -= op.cost; prog = True; break
    for s in streams: assert not s, s
    return out

def at(g, ops): return [(g, o) for o in ops]

def soft_first(x, base):
    mx = maxops(x)
    s = at(base + 15, mx[0][:5]) + at(base + 16, mx[0][5:8]) + at(base + 17, mx[0][8:])
    s += at(base + 18, [f_(x, 0, r) for r in range(4)] + [e_(x, 0, r) for r in range(4)])
    s += at(base + 18, [f_(x, 1, r) for r in range(4)])
    s += at(base + 27, mx[1][:5]) + [(base + 27, e_(x, 1, 0))] + at(base + 27, mx[1][5:8]) + [(base + 27, e_(x, 1, 1))]
    s += at(base + 27, mx[1][8:]) + at(base + 27, [e_(x, 1, 2), e_(x, 1, 3)])
    for c in (2, 3): s += at(base + 27, [f_(x, c, r) for r in range(4)] + [e_(x, c, r) for r in range(4)])
    if x == 0:
        for c in range(4): s += at(base + 27, [a_(x, c, r, True) for r in range(4)] + [cv(x, c, 0), cv(x, c, 1)])
    else:
        s += at(base + 27, [a_(x, 0, r, True) for r in range(4)] + [a_(x, 1, r) for r in range(4)])
    return s

def qprime(t):
    sc = {}; ex = {}
    if 2 <= t <= 7:
        n0 = 2 * (t - 2); qb = n0 // 6
        sc[39] = salu("s_add_u32", sT[0], sQB, HEAD + qb * 6144)
        for i, g in enumerate((44, 62)):
            cc = (n0 + i) % 6
            ex[g] = [bload(rr("a", QA(1, 0, qb, cc), 4), f"v{QV}", SQ, sT[0], cc * 64, mods=QM)]
    if 8 <= t <= 11:
        gi = t - 8
        sc[39] = salu("s_add_u32", sT[0], sQB, HEAD + TILE + gi * 3072)
        sc[42] = salu("s_add_u32", "m0", sWS, QST + gi * 3072)
        for j, g in enumerate((44, 56, 68)):
            ex[g] = [dma(f"v{DV[j]}", SQ, sT[0], 1024 * j, lds=QBtag, mods=QM)]
    return sc, ex

def stamp(i):
    return [raw("s_memtime s[60:61]", "smem", wr=["s60", "s61"])]
def stamp_save(i):
    return [valu("v_writelane_b32", f"v{TS}", "s60", i)]

def step(t):
    m = mfmas(t)
    first = (t & 15) == 0
    if not first:
        sc, mem = fixed(t)
        v = steady_valu(t)
        if (t & 15) == 1:
            bt = btail(True)
            gs = [g for g in range(0, 9) if g not in DMA_GAPS]
            for i, g in enumerate(gs): v[g] = bt[2 * i:2 * i + 2]
        qs, ex = qprime(t)
        for g, o in qs.items(): assert g not in sc; sc[g] = o
        for g, o in ex.items():
            assert g not in mem; mem[g] = o
        ex = {}
        if DIAG: ex[BAR_GAP] = stamp_save(t) + stamp(t + 1)
        return [comment(f"---- step {t}")] + emit_gaps(m, sc, mem, v, ex)
    if t == 0:
        sc, mem = fixed(0, bar_gap=30, dma_gaps=[32, 33, 34, 38, 41, 44])
        if DIAG: sc[30] = [sc[30]] + stamp_save(0) + stamp(1)
        A = soft_first(0, 0); B = soft_first(1, 48)
        return [comment("---- step 0")] + greedy(m, sc, mem, [A, B], {72: [(0, 0)], 95: [(1, 0)]})
    if t == 16:
        sc, mem = fixed(16)
        if DIAG: sc[BAR_GAP] = [sc[BAR_GAP]] + stamp_save(16) + stamp(17)
        free = [g for g in range(0, 36) if g not in mem and g >= 7][:12]
        for n, g in enumerate(free):
            qb, cc = divmod(n, 6)
            mem[g] = ds_read("ds_read_b128", rr("a", QA(1, 1, qb, cc), 4), f"v{T[10+(cc&1)]}", qb * 6144 + (cc >> 1) * 128, lds=QBtag)
        bt = at(0, btail(False))
        EA = at(4, epi_soff(0, 0) + epi_head(0, 0)) + at(4, epi_body(0, 0, False, {(0, 0), (0, 1)}))
        EA2 = at(999, epi_body(0, 0, PK, {(q, d) for q in range(2) for d in range(6)} - {(0, 0), (0, 1)}))
        A = soft_first(0, 0)
        EB = at(10, epi_soff(0, 1) + epi_head(0, 1))
        EB2 = at(999, epi_body(0, 1, PK))
        B = soft_first(1, 48)
        return [comment("---- step 16")] + greedy(m, sc, mem, [bt, A, EA, EA2, EB, B, EB2],
                 {24: [(0, 0), (2, 0), (3, 0), (4, 0)], 72: [(1, 0), (6, 0)], 95: [(5, 0)]})
    if t == 32:
        m = mfmas(32)[24:48]
        out = [comment("---- tail")] + btail(False) + epi_soff(1, 0) + epi_soff(1, 1)
        first_units = {(0, 0), (0, 1)}
        EA = at(0, epi_head(1, 0) + epi_body(1, 0, False, first_units))
        EB = at(0, epi_head(1, 1))
        out += greedy(m + [None], {}, {}, [EA, EB], {24: [(0, 0), (1, 0)]})
        out += epi_body(1, 0, PK, {(q, d) for q in range(2) for d in range(6)} - first_units)
        out += epi_body(1, 1, PK)
        return out

def prologue():
    o = []
    o.append(raw("s_load_dwordx8 s[36:43], s[0:1], 0", "smem", wr=R("s", 36, 8)))
    if DIAG:
        o.append(raw("s_load_dwordx2 s[62:63], s[0:1], 40", "smem", wr=["s62", "s63"]))
        o.append(raw("s_memtime s[64:65]", "smem", wr=["s64", "s65"]))
        o.append(raw("s_memrealtime s[66:67]", "smem", wr=["s66", "s67"]))
    o.append(salu("s_cmp_ge_u32", None, "s2", 256))
    o.append(raw("s_cbranch_scc1 L_end", "branch"))
    lane, i_, g_, t0, t1, t2 = "v1", "v2", "v3", "v4", "v5", "v6"
    o.append(valu("v_lshrrev_b32", t0, 6, "v0"))
    o.append(valu("v_and_b32", lane, 63, "v0"))
    o.append(valu("v_readfirstlane_b32", sW, t0))
    o.append(valu("v_and_b32", i_, 15, lane))
    o.append(valu("v_lshrrev_b32", g_, 4, lane))
    o.append(salu("s_and_b32", "s31", "s2", 7))
    o.append(salu("s_lshr_b32", "s32", "s2", 3))
    o.append(salu("s_lshl_b32", "s31", "s31", 4))
    o.append(salu("s_lshr_b32", "s33", "s32", 1))
    o.append(salu("s_add_u32", "s31", "s31", "s33"))
    o.append(salu("s_and_b32", "s32", "s32", 1))
    o.append(salu("s_mul_i32", "s31", "s31", 2 * HEAD))
    o.append(salu("s_mul_i32", sWL, sW, 3072))
    o.append(salu("s_mul_i32", sWS, sW, TILE))
    o.append(salu("s_add_u32", sKV, "s31", sWL))
    o.append(salu("s_mul_i32", "s32", "s32", 256 * 384))
    o.append(salu("s_mul_i32", "s33", sW, 64 * 384))
    o.append(salu("s_add_u32", sQB, "s31", "s32"))
    o.append(salu("s_add_u32", sQB, sQB, "s33"))
    o.append(salu("s_mov_b32", sC, hex(CBITS)))
    o.append(salu("s_mov_b32", sTHR, hex(THR)))
    o.append(salu("s_mov_b32", "s34", "0x31756420"))
    o.append(salu("s_and_b32", "s35", sW, 1))
    o.append(salu("s_lshl_b32", "s35", "s35", 4))
    o.append(valu("v_lshlrev_b32", t2, 4, lane))
    for j in range(3):
        o.append(valu("v_add_u32", t0, 64 * j, lane))
        o.append(valu("v_mul_u32_u24", t0, 171, t0))
        o.append(valu("v_lshrrev_b32", t0, 13, t0))
        o.append(valu("v_lshl_add_u32", t0, t0, 2, "s35"))
        o.append(valu("v_bfe_u32", t0, "s34", t0, 3))
        o.append(valu("v_lshlrev_b32", t0, 4, t0))
        o.append(valu("v_xor_b32", f"v{DV[j]}", t0, t2))
    o.append(valu("v_mul_u32_u24", t1, 384, i_))
    o.append(valu("v_lshl_add_u32", f"v{QV}", g_, 4, t1))
    o.append(raw("s_waitcnt lgkmcnt(0)", "salu"))
    for base, src in ((4, 36), (8, 38), (12, 40), (16, 42)):
        o.append(salu("s_mov_b32", f"s{base}", f"s{src}"))
        o.append(salu("s_and_b32", f"s{base+1}", f"s{src+1}", "0xffff"))
        o.append(salu("s_mov_b32", f"s{base+2}", "0x3000000"))
        o.append(salu("s_mov_b32", f"s{base+3}", "0x20000"))
    def kd(t): return [m0_k(t), nop(1)] + [dma_k(t, j) for j in range(3)]
    def vd(t): return [m0_v(t), nop(1)] + [dma_v(t, j) for j in range(3)]
    def qd(x):
        r = []
        for qb in range(2):
            r.append(salu("s_add_u32", sT[qb], sQB, x * TILE + qb * 6144))
            r += [bload(rr("a", QA(0, x, qb, cc), 4), f"v{QV}", SQ, sT[qb], cc * 64, mods=QM) for cc in range(6)]
        return r
    o += kd(0) + qd(0) + qd(1)
    for t in range(NV - 1):
        o += vd(t) + [adv()] + kd(t + 1)
    o.append(valu("v_and_b32", t0, 1, g_))
    o.append(valu("v_lshl_add_u32", t0, t0, 5, t1))
    o.append(valu("v_lshrrev_b32", t2, 1, g_))
    o.append(valu("v_lshl_add_u32", f"v{SV}", t2, 4, t0))
    o.append(valu("v_lshrrev_b32", t0, 1, i_))
    o.append(valu("v_lshlrev_b32", t0, 2, t0))
    o.append(valu("v_bfe_u32", t0, "s34", t0, 3))
    o.append(valu("v_xor_b32", t0, t0, g_))
    o.append(valu("v_lshl_add_u32", f"v{KA[0]}", t0, 4, t1))
    o.append(valu("v_xor_b32", f"v{KA[1]}", 64, f"v{KA[0]}"))
    o.append(valu("v_bfe_u32", t0, i_, 1, 2))
    o.append(valu("v_lshl_add_u32", t0, t0, 2, "s35"))
    o.append(valu("v_bfe_u32", t0, "s34", t0, 3))
    o.append(valu("v_xor_b32", t0, t0, g_))
    o.append(valu("v_lshl_add_u32", t0, t0, 4, t1))
    o.append(salu("s_add_u32", "s33", sWS, QST))
    o.append(valu("v_add_u32", f"v{T[10]}", "s33", t0))
    o.append(valu("v_xor_b32", f"v{T[11]}", 64, f"v{T[10]}"))
    o.append(valu("v_lshrrev_b32", t0, 2, i_))
    o.append(valu("v_lshl_add_u32", t0, g_, 2, t0))
    o.append(valu("v_lshrrev_b32", t2, 1, t0))
    o.append(valu("v_lshlrev_b32", t2, 2, t2))
    o.append(valu("v_bfe_u32", t2, "s34", t2, 3))
    o.append(valu("v_mul_u32_u24", t0, 384, t0))
    o.append(valu("v_bfe_u32", t1, i_, 1, 1))
    o.append(valu("v_xor_b32", t2, t2, t1))
    o.append(valu("v_lshl_add_u32", t0, t2, 4, t0))
    o.append(valu("v_and_b32", t1, 1, i_))
    o.append(valu("v_lshl_add_u32", t0, t1, 3, t0))
    o.append(valu("v_add_u32", f"v{VA[0]}", VRING, t0))
    for k in range(1, 4): o.append(valu("v_xor_b32", f"v{VA[k]}", 32 * k, f"v{VA[0]}"))
    if DIAG: o.append(valu("v_mov_b32", f"v{TS}", 0))
    o.append(wait(vm={Ktag(0)}))
    o.append(barrier())
    o += [kread(0, n) for n in range(12)]
    if DIAG: o += stamp(0)
    return o

def slow_path():
    o = []
    segs = []
    lane, i_, g_ = f"v{T[8]}", f"v{T[9]}", f"v{T[10]}"
    lin, tra = f"v{T[11]}", f"v{VA[0]}"
    o.append(label("L_slow"))
    o.append(raw("s_waitcnt vmcnt(0) lgkmcnt(0)", "salu"))
    o.append(valu("v_mbcnt_lo_u32_b32", lane, -1, 0))
    o.append(valu("v_mbcnt_hi_u32_b32", lane, -1, lane))
    o.append(valu("v_and_b32", i_, 15, lane))
    o.append(valu("v_lshrrev_b32", g_, 4, lane))
    o.append(valu("v_lshlrev_b32", lin, 4, lane))
    o.append(valu("v_lshrrev_b32", tra, 2, i_))
    o.append(valu("v_lshl_add_u32", tra, g_, 2, tra))
    o.append(valu("v_mul_u32_u24", tra, 384, tra))
    o.append(valu("v_and_b32", i_, 3, i_))
    o.append(valu("v_lshl_add_u32", tra, i_, 3, tra))
    o.append(salu("s_add_u32", "s69", sWS, QST))
    o.append(valu("v_add_u32", tra, "s69", tra))
    o.append(salu("s_mov_b32", "s68", 0))
    o.append(label("L_slow_combo"))
    o.append(salu("s_bitcmp1_b32", None, "s70", "s68"))
    o.append(raw("s_cbranch_scc0 L_slow_next", "branch"))
    o.append(salu("s_lshr_b32", "s71", "s68", 1))
    o.append(salu("s_and_b32", "s72", "s68", 1))
    o.append(salu("s_mul_i32", "s71", "s71", HEAD))
    o.append(salu("s_mul_i32", "s72", "s72", TILE))
    o.append(salu("s_add_u32", sT[0], sQB, "s71"))
    o.append(salu("s_add_u32", sT[0], sT[0], "s72"))
    o.append(salu("s_add_u32", sT[1], sT[0], 6144))
    o.append(salu("s_add_u32", "s73", "s31", "s71"))
    for qb in range(2):
        o += [bload(rr("a", QA(0, 0, qb, cc), 4), f"v{QV}", SQ, sT[qb], cc * 64) for cc in range(6)]
        o.append(valu("v_mov_b32", f"v{NM(0,qb)}", "0xff800000"))
        o.append(valu("v_mov_b32", f"v{L(0,qb)}", 0))
    for r in range(96): o.append(valu("v_mov_b32", f"v{r}", 0))
    o.append(raw("s_waitcnt vmcnt(0)", "salu"))
    o.append(salu("s_mov_b32", "s74", 0))
    o.append(label("L_slow_pass"))
    o.append(salu("s_mov_b32", "s75", "s73"))
    o.append(salu("s_add_u32", "s76", "s73", HEAD))
    o.append(label("L_slow_tile"))
    o.append(salu("s_add_u32", "s77", "s75", 6144))
    for kb in range(2):
        o += [bload(rr("a", KF(kb, cc), 4), f"v{QV}", SK, ("s75", "s77")[kb], cc * 64) for cc in range(6)]
    o.append(salu("s_mov_b32", "m0", "s69"))
    o.append(salu("s_mov_b32", "s77", "s75"))
    for k in range(3):
        o += [dma(lin, SVV, "s77", 1024 * j) for j in range(4)]
        if k < 2:
            o.append(salu("s_add_u32", "m0", "m0", 4096))
            o.append(salu("s_add_u32", "s77", "s77", 4096))
    o.append(raw("s_waitcnt vmcnt(0)", "salu"))
    o += [qk(0, 0, n) for n in range(24)]
    o.append(nop(8))
    o.append(salu("s_cmp_eq_u32", None, "s74", 0))
    o.append(raw("s_cbranch_scc0 L_slow_p2", "branch"))
    for qb in range(2):
        for r in range(0, 8, 2):
            o.append(valu("v_max3_f32", f"v{NM(0,qb)}", f"v{NM(0,qb)}", f"v{P(0,qb)+r}", f"v{P(0,qb)+r+1}"))
    o.append(raw("s_branch L_slow_tile_end", "branch"))
    o.append(label("L_slow_p2"))
    for n in range(24):
        db, h = divmod(n, 2)
        o.append(ds_read("ds_read_b64_tr_b16", rr("a", VF(db) + 2 * h, 2), tra, h * 6144 + db * 32))
        if n == 11: o.append(raw("s_waitcnt lgkmcnt(0)", "salu"))
    for c in range(4): o += [f_(0, c, r) for r in range(4)]
    for c in range(4): o += [e_(0, c, r) for r in range(4)]
    o.append(nop(1))
    for c in range(4): o += [a_(0, c, r) for r in range(4)]
    for c in range(4): o += [cv(0, c, 0), cv(0, c, 1)]
    o.append(raw("s_waitcnt lgkmcnt(0)", "salu"))
    o.append(nop(2))
    o += [pv(1, 0, n) for n in range(24)]
    o.append(label("L_slow_tile_end"))
    o.append(nop(8))
    o.append(salu("s_add_u32", "s75", "s75", TILE))
    o.append(salu("s_cmp_lt_u32", None, "s75", "s76"))
    o.append(raw("s_cbranch_scc1 L_slow_tile", "branch"))
    o.append(salu("s_cmp_eq_u32", None, "s74", 0))
    o.append(raw("s_cbranch_scc0 L_slow_fin", "branch"))
    mx = maxops(0)
    for qb in range(2): o += mx[qb][4:]
    o.append(salu("s_mov_b32", "s74", 1))
    o.append(raw("s_branch L_slow_pass", "branch"))
    o.append(label("L_slow_fin"))
    o += epi_head(0, 0) + epi_body(0, 0, False)
    o.append(raw("s_waitcnt vmcnt(0)", "salu"))
    o.append(label("L_slow_next"))
    o.append(salu("s_add_u32", "s68", "s68", 1))
    o.append(salu("s_cmp_lt_u32", None, "s68", 4))
    o.append(raw("s_cbranch_scc1 L_slow_combo", "branch"))
    o.append(raw("s_endpgm", "branch"))
    return o

def finish():
    o = []
    if DIAG:
        o.append(raw("s_waitcnt lgkmcnt(0)", "salu"))
        o += stamp_save(32)
        o.append(raw("s_memtime s[60:61]", "smem"))
        o.append(raw("s_waitcnt lgkmcnt(0)", "salu"))
        o += stamp_save(33)
        o.append(raw("s_waitcnt vmcnt(0)", "salu"))
        o.append(raw("s_memtime s[60:61]", "smem"))
        o.append(raw("s_memrealtime s[78:79]", "smem"))
        o.append(raw("s_waitcnt lgkmcnt(0)", "salu"))
        o += stamp_save(34)
        o.append(valu("v_writelane_b32", f"v{TS}", "s64", 40))
        o.append(valu("v_writelane_b32", f"v{TS}", "s66", 41))
        o.append(valu("v_writelane_b32", f"v{TS}", "s78", 42))
        o.append(salu("s_mov_b32", "s80", "s62"))
        o.append(salu("s_and_b32", "s81", "s63", "0xffff"))
        o.append(salu("s_mov_b32", "s82", "0x10000000"))
        o.append(salu("s_mov_b32", "s83", "0x20000"))
        o.append(salu("s_lshl_b32", "s84", "s2", 2))
        o.append(salu("s_add_u32", "s84", "s84", sW))
        o.append(salu("s_lshl_b32", "s84", "s84", 8))
        o.append(valu("v_mbcnt_lo_u32_b32", f"v{T[8]}", -1, 0))
        o.append(valu("v_mbcnt_hi_u32_b32", f"v{T[8]}", -1, f"v{T[8]}"))
        o.append(valu("v_lshlrev_b32", f"v{T[8]}", 2, f"v{T[8]}"))
        o.append(bstore(f"v{TS}", f"v{T[8]}", "s[80:83]", "s84", 0, op="buffer_store_dword"))
    o.append(salu("s_mov_b32", "s70", 15 if FORCE_SLOW else 0))
    for combo in range(4):
        f0 = FLAG(combo >> 1, combo & 1, 0)
        o.append(salu("s_or_b64", "s[72:73]", f"s[{f0}:{f0+1}]", f"s[{f0+2}:{f0+3}]"))
        o.append(salu("s_cselect_b32", "s71", 1 << combo, 0))
        o.append(salu("s_or_b32", "s70", "s70", "s71"))
    o.append(raw("s_cbranch_scc1 L_slow", "branch"))
    o.append(label("L_end"))
    o.append(raw("s_endpgm", "branch"))
    return o

def build():
    tr = prologue()
    for t in range(33): tr += step(t)
    tr += finish()
    tr = insert_waits(tr)
    tr, added = fix_hazards(tr)
    errs, issued = verify(tr, private=lambda tag: tag == QBtag)
    for e in errs[:30]: print("ERR", e)
    assert not errs
    assert all(v == (12 if k == QBtag else 3) for k, v in issued.items()) and len(issued) == 65, issued
    cur = "pro"; seg = {}
    for ins in tr:
        if ins.t.startswith("; ----"): cur = ins.t[7:]
        seg.setdefault(cur, []).append(ins)
    tot = 0
    for k, s in seg.items():
        c = est_cycles(s); tot += c
        if k in ("pro", "step 0", "step 1", "step 2", "step 8", "step 15", "step 16", "step 17", "step 18", "step 31", "tail"):
            print(f"{k:8s} instrs {len(s):4d} est cycles {c:5d} nops {sum(1 for i in s if i.k=='nop')} waits {sum(1 for i in s if i.k=='wait')}")
    print("total est cycles", tot)
    sp, _ = fix_hazards(slow_path())
    return tr + sp

HDR = open("standalone__mha_softmax__near_ridge.s.ref").read().split("; @launch")[0]
def main():
    tr = build()
    o = [HDR + f"; @launch grid=(256,1,1) block=(256,1,1) lds={LDS_BYTES}",
         '.amdgcn_target "amdgcn-amd-amdhsa--gfx950"', ".text", f".globl {KN}", ".p2align 8",
         f".type {KN},@function", f"{KN}:"]
    for ins in tr: o.append(ins.t if ins.k == "label" else "  " + ins.t)
    o.append(f'''.section .rodata,"a"
.p2align 6
.amdhsa_kernel {KN}
  .amdhsa_next_free_vgpr 512
  .amdhsa_next_free_sgpr 102
  .amdhsa_accum_offset 256
  .amdhsa_group_segment_fixed_size 0
  .amdhsa_kernarg_size 48
  .amdhsa_user_sgpr_count 2
  .amdhsa_user_sgpr_kernarg_segment_ptr 1
  .amdhsa_system_sgpr_workgroup_id_x 1
.end_amdhsa_kernel''')
    open(sys.argv[1], "w").write("\n".join(o) + "\n")
main()
```

```python
import sys, struct, math
sys.path.insert(0, "gen")
from fw import *

OPT = dict(x.split("=") for x in sys.argv[2:])
DIAG = int(OPT.get("diag", 0))
DBG = int(OPT.get("dbg", 0))
FORCE_SLOW = int(OPT.get("force_slow", 0))
PK = int(OPT.get("pk", 1))
def _m(k): return "".join(" " + x for x in OPT.get(k, "").split("+") if x)
LM = _m("lm"); QM = _m("qm"); SM = _m("sm")
KN = "standalone__mha_softmax__near_ridge_kernel"

TILE = 12288; HEAD = 196608
NK = 4; NV = 4
KRING = 0; VRING = NK * TILE; QST = VRING + NV * TILE
LDS_BYTES = QST + 4 * TILE

def O(x, qb, db): return x * 96 + qb * 48 + db * 4
def S(x, c): return 192 + x * 16 + c * 4
def P(x, qb): return 192 + x * 16 + qb * 8
def L(x, qb): return 224 + 2 * x + qb
def NM(x, qb): return 228 + 2 * x + qb
KA = [232, 233]; VA = [234, 235, 236, 237]; DV = [238, 239, 240]
QV = 241; SV = 242
T = list(range(243, 255))
TS = 255
def QA(blk, x, qb, cc):
    base = 192 if (blk == 1 and x == 0) else x * 48
    return base + qb * 24 + cc * 4
def KF(kb, cc): return 96 + kb * 24 + cc * 4
def VF(db): return 144 + db * 4
SQ, SK, SVV, SO = "s[4:7]", "s[8:11]", "s[12:15]", "s[16:19]"
sKV, sWL, sC, sQB, sW, sTHR, sWS = "s20", "s21", "s22", "s23", "s29", "s28", "s30"
sT = ["s24", "s25", "s26", "s27"]
def FLAG(blk, x, qb): return 44 + 2 * (4 * blk + 2 * x + qb)
CBITS = struct.unpack("<I", struct.pack("<f", 192 ** -0.5 * math.log2(math.e)))[0]
THR = 0x4b800000

def Ktag(t): return (f"K{t}", ("K", t % NK))
def Vtag(t): return (f"V{t}", ("V", t % NV))
QBtag = ("QB", ("QB", 0))

def qk(t, x, n):
    c, cc = divmod(n, 6); qb, kb = divmod(c, 2)
    d = rr("v", S(x, c), 4)
    return mfma(d, rr("a", KF(kb, cc), 4), rr("a", QA(t >> 4, x, qb, cc), 4), d if cc else 0)
def pv(t, x, n):
    qb, db = divmod(n, 12)
    d = rr("v", O(x, qb, db), 4)
    return mfma(d, rr("a", VF(db), 4), rr("v", P(x, qb), 4), d if (t & 15) else 0)
def f_(x, c, r): return valu("v_fma_f32", f"v{S(x,c)+r}", f"v{S(x,c)+r}", sC, f"v{NM(x,c>>1)}")
def e_(x, c, r): return valu("v_exp_f32", f"v{S(x,c)+r}", f"v{S(x,c)+r}")
def a_(x, c, r, first=False):
    l = f"v{L(x,c>>1)}"
    if first and (c & 1) == 0 and r == 0: return valu("v_mov_b32", l, f"v{S(x,c)+r}")
    return valu("v_add_f32", l, l, f"v{S(x,c)+r}")
def cv(x, c, h):
    qb, kb = divmod(c, 2)
    return valu("v_cvt_pk_bf16_f32", f"v{P(x,qb)+2*kb+h}", f"v{S(x,c)+2*h}", f"v{S(x,c)+2*h+1}")
def kread(t, n):
    kb, cc = divmod(n, 6)
    return ds_read("ds_read_b128", rr("a", KF(kb, cc), 4), f"v{KA[cc&1]}", KRING + (t % NK) * TILE + kb * 6144 + (cc >> 1) * 128, lds=Ktag(t))
def vread(t, n):
    db, h = divmod(n, 2)
    return ds_read("ds_read_b64_tr_b16", rr("a", VF(db) + 2 * h, 2), f"v{VA[db&3]}", (t % NV) * TILE + h * 6144 + (db >> 2) * 128, lds=Vtag(t))
def m0_k(t): return salu("s_add_u32", "m0", sWL, KRING + (t % NK) * TILE)
def m0_v(t): return salu("s_add_u32", "m0", sWL, VRING + (t % NV) * TILE)
def dma_k(t, j): return dma(f"v{DV[j]}", SK, sKV, 1024 * j, lds=Ktag(t), mods=LM)
def dma_v(t, j): return dma(f"v{DV[j]}", SVV, sKV, 1024 * j, lds=Vtag(t), mods=LM)
def adv(): return salu("s_add_u32", sKV, sKV, TILE)

def maxops(x):
    res = []
    for qb in range(2):
        s = P(x, qb); m = f"v{NM(x,qb)}"; t = f"v{T[8+qb]}"
        res.append([
            valu("v_max3_f32", m, f"v{s}", f"v{s+1}", f"v{s+2}"),
            valu("v_max3_f32", t, f"v{s+3}", f"v{s+4}", f"v{s+5}"),
            valu("v_max3_f32", m, m, f"v{s+6}", f"v{s+7}"),
            valu("v_max_f32", m, m, t),
            valu("v_mov_b32", t, m),
            swap("v_permlane16_swap_b32", m, t),
            valu("v_max_f32", m, m, t),
            valu("v_mov_b32", t, m),
            swap("v_permlane32_swap_b32", m, t),
            valu("v_max_f32", m, m, t),
            valu("v_mul_f32_e64", m, m, "-" + sC),
        ])
    return res

def interleave(*ls):
    out = []; n = max(len(l) for l in ls)
    for i in range(n):
        for l in ls:
            if i < len(l): out.append(l[i])
    return out

def epi_head(blk, x):
    res = []
    for qb in range(2):
        l = f"v{L(x,qb)}"; r = f"v{T[2*x+qb]}"; t = f"v{T[4+2*x+qb]}"
        fl = FLAG(blk, x, qb)
        res.append([
            valu("v_mov_b32", t, l),
            valu("v_mov_b32", r, l),
            swap("v_permlane16_swap_b32", r, t),
            valu("v_add_f32", r, r, t),
            valu("v_mov_b32", t, r),
            swap("v_permlane32_swap_b32", r, t),
            valu("v_add_f32", r, r, t),
            valu("v_cmp_ngt_f32_e64", f"s[{fl}:{fl+1}]", sTHR, r),
            valu("v_rcp_f32", r, r),
        ])
    return interleave(*res)

def epi_unit(blk, x, qb, dp, pk, so):
    b = O(x, qb, 2 * dp); r = T[2 * x + qb]
    ops = []
    if pk:
        re_ = r & ~1
        sel = r & 1
        for i in range(4):
            ops.append(valu("v_pk_mul_f32", rr("v", b + 2 * i, 2), rr("v", b + 2 * i, 2), rr("v", re_, 2),
                            mods=f"op_sel:[0,{sel}] op_sel_hi:[1,{sel}]"))
    else:
        for i in range(8): ops.append(valu("v_mul_f32", f"v{b+i}", f"v{b+i}", f"v{r}"))
    for i in range(4): ops.append(valu("v_cvt_pk_bf16_f32", f"v{b+i}", f"v{b+2*i}", f"v{b+2*i+1}"))
    tail = [swap("v_permlane16_swap_b32", f"v{b}", f"v{b+2}"), swap("v_permlane16_swap_b32", f"v{b+1}", f"v{b+3}"),
            bstore(rr("v", b, 4), f"v{SV}", SO, so, 64 * dp, mods=SM)]
    return ops, tail

def epi_body(blk, x, pk, units=None):
    out = []; pend = []
    for qb in range(2):
        so = sT[2 * x + qb]
        for dp in range(6):
            if units is not None and (qb, dp) not in units: continue
            ops, tail = epi_unit(blk, x, qb, dp, pk, so)
            out += ops[:2] + pend[:2] + ops[2:4] + pend[2:] + ops[4:]
            pend = tail
    return out + pend

def epi_soff(blk, x):
    return [salu("s_add_u32", sT[2 * x + qb], sQB, blk * HEAD + x * TILE + qb * 6144) for qb in range(2)]

DMA_GAPS = [6, 11, 16, 21, 26, 31]
BAR_GAP = 4

def mfmas(t):
    m = []
    m += [qk(t, 0, n) for n in range(24)] if t < 32 else [None] * 24
    m += [pv(t - 1, 1, n) for n in range(24)] if t >= 1 else [None] * 24
    m += [qk(t, 1, n) for n in range(24)] if t < 32 else [None] * 24
    m += [pv(t, 0, n) for n in range(24)] if t < 32 else [None] * 24
    return m

def fixed(t, bar_gap=BAR_GAP, dma_gaps=DMA_GAPS):
    sc = {}; mem = {}
    need = set()
    if t < 32: need.add(Vtag(t))
    if t + 1 < 32: need.add(Ktag(t + 1))
    if t < 32:
        sc[bar_gap - 1] = wait(vm=need, lgkm=0)
        sc[bar_gap] = barrier()
    if t + NV - 1 < 32:
        sc[dma_gaps[0] - 1] = m0_v(t + NV - 1)
        for j in range(3): mem[dma_gaps[j]] = dma_v(t + NV - 1, j)
    if t + NK < 32:
        sc[dma_gaps[3] - 2] = adv()
        sc[dma_gaps[3] - 1] = m0_k(t + NK)
        for j in range(3): mem[dma_gaps[3 + j]] = dma_k(t + NK, j)
    if t < 32:
        for n in range(24): mem[36 + 3 * (n >> 1) + (n & 1)] = vread(t, n)
    if t + 1 < 32:
        for n in range(12): mem[72 + 2 * n] = kread(t + 1, n)
    return sc, mem

def btail(first):
    return [cv(1, 0, 0), cv(1, 0, 1), cv(1, 1, 0), cv(1, 1, 1)] + [a_(1, 2, r, first) for r in range(4)] + \
           [a_(1, 3, r) for r in range(4)] + [cv(1, 2, 0), cv(1, 2, 1), cv(1, 3, 0), cv(1, 3, 1)]

def steady_valu(t):
    v = {g: [] for g in range(96)}
    bt = btail(False)
    gs = [g for g in range(0, 9) if g not in DMA_GAPS]
    for i, g in enumerate(gs): v[g] = bt[2 * i:2 * i + 2]
    gs = [g for g in range(9, 36) if g not in DMA_GAPS] + [38, 41]
    i = 0
    for c in range(4):
        v[gs[i]] = [f_(0, c, 0), f_(0, c, 1)]; v[gs[i + 1]] = [f_(0, c, 2), f_(0, c, 3)]; i += 2
        for r in range(4): v[gs[i]] = [e_(0, c, r)]; i += 1
    sing = []
    for c in range(4): sing += [a_(0, c, r) for r in range(4)] + [cv(0, c, 0), cv(0, c, 1)]
    for g in range(36, 57):
        if g in (38, 41): continue
        n = 2 if (g - 36) % 3 == 2 else 1
        v[g] = sing[:n]; sing = sing[n:]
    assert not sing
    fs = [f_(1, c, r) for c in range(4) for r in range(4)] + [a_(1, 0, r) for r in range(4)] + [a_(1, 1, 0), a_(1, 1, 1)]
    sg = [57, 58, 60, 61, 63, 64, 66, 67, 69, 70] + list(range(72, 96, 2))
    for g, op in zip(sg, fs): v[g] = [op]
    eg = [59, 62, 65, 68, 71] + list(range(73, 95, 2))
    for g, op in zip(eg, [e_(1, c, r) for c in range(4) for r in range(4)]): v[g] = [op]
    v[95] = [a_(1, 1, 2), a_(1, 1, 3)]
    return v

def emit_gaps(m, sc, mem, v, extra=None):
    out = []
    for g in range(len(m)):
        if m[g] is not None: out.append(m[g])
        for d in (sc, mem):
            x = d.get(g)
            if x is None: continue
            out += x if isinstance(x, list) else [x]
        out += v.get(g, [])
        if extra and g in extra: out += extra[g]
    return out

def greedy(m, sc, mem, streams, drains):
    v = {}; pre = {}
    streams = [list(s) for s in streams]
    out = []
    for g in range(len(m)):
        for si, cnt in drains.get(g, []):
            s = streams[si]
            while s and len(s) > cnt: out.append(s.pop(0)[1])
        cap = 2
        if m[g] is not None: out.append(m[g])
        for d in (sc, mem):
            x = d.get(g)
            if x is None: continue
            x = x if isinstance(x, list) else [x]
            out += x
            if d is mem: cap -= sum(o.cost for o in x)
        prog = True
        while cap > 0 and prog:
            prog = False
            for s in streams:
                if s and s[0][0] <= g and s[0][1].cost <= cap:
                    op = s.pop(0)[1]; out.append(op); cap -= op.cost; prog = True; break
    for s in streams: assert not s, s
    return out

def at(g, ops): return [(g, o) for o in ops]

def soft_first(x, base):
    mx = maxops(x)
    s = at(base + 15, mx[0][:5]) + at(base + 16, mx[0][5:8]) + at(base + 17, mx[0][8:])
    s += at(base + 18, [f_(x, 0, r) for r in range(4)] + [e_(x, 0, r) for r in range(4)])
    s += at(base + 18, [f_(x, 1, r) for r in range(4)])
    s += at(base + 27, mx[1][:5]) + [(base + 27, e_(x, 1, 0))] + at(base + 27, mx[1][5:8]) + [(base + 27, e_(x, 1, 1))]
    s += at(base + 27, mx[1][8:]) + at(base + 27, [e_(x, 1, 2), e_(x, 1, 3)])
    for c in (2, 3): s += at(base + 27, [f_(x, c, r) for r in range(4)] + [e_(x, c, r) for r in range(4)])
    if x == 0:
        for c in range(4): s += at(base + 27, [a_(x, c, r, True) for r in range(4)] + [cv(x, c, 0), cv(x, c, 1)])
    else:
        s += at(base + 27, [a_(x, 0, r, True) for r in range(4)] + [a_(x, 1, r) for r in range(4)])
    return s

def qprime(t):
    sc = {}; ex = {}
    if 2 <= t <= 7:
        n0 = 2 * (t - 2); qb = n0 // 6
        sc[39] = salu("s_add_u32", sT[0], sQB, HEAD + qb * 6144)
        for i, g in enumerate((44, 62)):
            cc = (n0 + i) % 6
            ex[g] = [bload(rr("a", QA(1, 0, qb, cc), 4), f"v{QV}", SQ, sT[0], cc * 64, mods=QM)]
    if 8 <= t <= 11:
        gi = t - 8
        sc[39] = salu("s_add_u32", sT[0], sQB, HEAD + TILE + gi * 3072)
        sc[42] = salu("s_add_u32", "m0", sWS, QST + gi * 3072)
        for j, g in enumerate((44, 56, 68)):
            ex[g] = [dma(f"v{DV[j]}", SQ, sT[0], 1024 * j, lds=QBtag, mods=QM)]
    return sc, ex

def stamp(i):
    return [raw("s_memtime s[60:61]", "smem", wr=["s60", "s61"])]
def stamp_save(i):
    return [valu("v_writelane_b32", f"v{TS}", "s60", i)]

def step(t):
    m = mfmas(t)
    first = (t & 15) == 0
    if not first:
        sc, mem = fixed(t)
        v = steady_valu(t)
        if (t & 15) == 1:
            bt = btail(True)
            gs = [g for g in range(0, 9) if g not in DMA_GAPS]
            for i, g in enumerate(gs): v[g] = bt[2 * i:2 * i + 2]
        qs, ex = qprime(t)
        for g, o in qs.items(): assert g not in sc; sc[g] = o
        for g, o in ex.items():
            assert g not in mem; mem[g] = o
        ex = {}
        if DIAG: ex[BAR_GAP] = stamp_save(t) + stamp(t + 1)
        return [comment(f"---- step {t}")] + emit_gaps(m, sc, mem, v, ex)
    if t == 0:
        sc, mem = fixed(0, bar_gap=30, dma_gaps=[32, 33, 34, 38, 41, 44])
        if DIAG: sc[30] = [sc[30]] + stamp_save(0) + stamp(1)
        A = soft_first(0, 0); B = soft_first(1, 48)
        return [comment("---- step 0")] + greedy(m, sc, mem, [A, B], {72: [(0, 0)], 95: [(1, 0)]})
    if t == 16:
        sc, mem = fixed(16)
        if DIAG: sc[BAR_GAP] = [sc[BAR_GAP]] + stamp_save(16) + stamp(17)
        free = [g for g in range(0, 36) if g not in mem and g >= 7][:12]
        for n, g in enumerate(free):
            qb, cc = divmod(n, 6)
            mem[g] = ds_read("ds_read_b128", rr("a", QA(1, 1, qb, cc), 4), f"v{T[10+(cc&1)]}", qb * 6144 + (cc >> 1) * 128, lds=QBtag)
        bt = at(0, btail(False))
        EA = at(4, epi_soff(0, 0) + epi_head(0, 0)) + at(4, epi_body(0, 0, False, {(0, 0), (0, 1)}))
        EA2 = at(999, epi_body(0, 0, PK, {(q, d) for q in range(2) for d in range(6)} - {(0, 0), (0, 1)}))
        A = soft_first(0, 0)
        EB = at(10, epi_soff(0, 1) + epi_head(0, 1))
        EB2 = at(999, epi_body(0, 1, PK))
        B = soft_first(1, 48)
        return [comment("---- step 16")] + greedy(m, sc, mem, [bt, A, EA, EA2, EB, B, EB2],
                 {24: [(0, 0), (2, 0), (3, 0), (4, 0)], 72: [(1, 0), (6, 0)], 95: [(5, 0)]})
    if t == 32:
        m = mfmas(32)[24:48]
        out = [comment("---- tail")] + btail(False) + epi_soff(1, 0) + epi_soff(1, 1)
        first_units = {(0, 0), (0, 1)}
        EA = at(0, epi_head(1, 0) + epi_body(1, 0, False, first_units))
        EB = at(0, epi_head(1, 1))
        out += greedy(m + [None], {}, {}, [EA, EB], {24: [(0, 0), (1, 0)]})
        out += epi_body(1, 0, PK, {(q, d) for q in range(2) for d in range(6)} - first_units)
        out += epi_body(1, 1, PK)
        return out

def prologue():
    o = []
    o.append(raw("s_load_dwordx8 s[36:43], s[0:1], 0", "smem", wr=R("s", 36, 8)))
    if DIAG:
        o.append(raw("s_load_dwordx2 s[62:63], s[0:1], 40", "smem", wr=["s62", "s63"]))
        o.append(raw("s_memtime s[64:65]", "smem", wr=["s64", "s65"]))
        o.append(raw("s_memrealtime s[66:67]", "smem", wr=["s66", "s67"]))
    o.append(salu("s_cmp_ge_u32", None, "s2", 256))
    o.append(raw("s_cbranch_scc1 L_end", "branch"))
    lane, i_, g_, t0, t1, t2 = "v1", "v2", "v3", "v4", "v5", "v6"
    o.append(valu("v_lshrrev_b32", t0, 6, "v0"))
    o.append(valu("v_and_b32", lane, 63, "v0"))
    o.append(valu("v_readfirstlane_b32", sW, t0))
    o.append(valu("v_and_b32", i_, 15, lane))
    o.append(valu("v_lshrrev_b32", g_, 4, lane))
    o.append(salu("s_and_b32", "s31", "s2", 7))
    o.append(salu("s_lshr_b32", "s32", "s2", 3))
    o.append(salu("s_lshl_b32", "s31", "s31", 4))
    o.append(salu("s_lshr_b32", "s33", "s32", 1))
    o.append(salu("s_add_u32", "s31", "s31", "s33"))
    o.append(salu("s_and_b32", "s32", "s32", 1))
    o.append(salu("s_mul_i32", "s31", "s31", 2 * HEAD))
    o.append(salu("s_mul_i32", sWL, sW, 3072))
    o.append(salu("s_mul_i32", sWS, sW, TILE))
    o.append(salu("s_add_u32", sKV, "s31", sWL))
    o.append(salu("s_mul_i32", "s32", "s32", 256 * 384))
    o.append(salu("s_mul_i32", "s33", sW, 64 * 384))
    o.append(salu("s_add_u32", sQB, "s31", "s32"))
    o.append(salu("s_add_u32", sQB, sQB, "s33"))
    o.append(salu("s_mov_b32", sC, hex(CBITS)))
    o.append(salu("s_mov_b32", sTHR, hex(THR)))
    o.append(salu("s_mov_b32", "s34", "0x31756420"))
    o.append(salu("s_and_b32", "s35", sW, 1))
    o.append(salu("s_lshl_b32", "s35", "s35", 4))
    o.append(valu("v_lshlrev_b32", t2, 4, lane))
    for j in range(3):
        o.append(valu("v_add_u32", t0, 64 * j, lane))
        o.append(valu("v_mul_u32_u24", t0, 171, t0))
        o.append(valu("v_lshrrev_b32", t0, 13, t0))
        o.append(valu("v_lshl_add_u32", t0, t0, 2, "s35"))
        o.append(valu("v_bfe_u32", t0, "s34", t0, 3))
        o.append(valu("v_lshlrev_b32", t0, 4, t0))
        o.append(valu("v_xor_b32", f"v{DV[j]}", t0, t2))
    o.append(valu("v_mul_u32_u24", t1, 384, i_))
    o.append(valu("v_lshl_add_u32", f"v{QV}", g_, 4, t1))
    o.append(raw("s_waitcnt lgkmcnt(0)", "salu"))
    for base, src in ((4, 36), (8, 38), (12, 40), (16, 42)):
        o.append(salu("s_mov_b32", f"s{base}", f"s{src}"))
        o.append(salu("s_and_b32", f"s{base+1}", f"s{src+1}", "0xffff"))
        o.append(salu("s_mov_b32", f"s{base+2}", "0x3000000"))
        o.append(salu("s_mov_b32", f"s{base+3}", "0x20000"))
    def kd(t): return [m0_k(t), nop(1)] + [dma_k(t, j) for j in range(3)]
    def vd(t): return [m0_v(t), nop(1)] + [dma_v(t, j) for j in range(3)]
    def qd(x):
        r = []
        for qb in range(2):
            r.append(salu("s_add_u32", sT[qb], sQB, x * TILE + qb * 6144))
            r += [bload(rr("a", QA(0, x, qb, cc), 4), f"v{QV}", SQ, sT[qb], cc * 64, mods=QM) for cc in range(6)]
        return r
    o += kd(0) + qd(0) + qd(1)
    for t in range(NV - 1):
        o += vd(t) + [adv()] + kd(t + 1)
    o.append(valu("v_and_b32", t0, 1, g_))
    o.append(valu("v_lshl_add_u32", t0, t0, 5, t1))
    o.append(valu("v_lshrrev_b32", t2, 1, g_))
    o.append(valu("v_lshl_add_u32", f"v{SV}", t2, 4, t0))
    o.append(valu("v_lshrrev_b32", t0, 1, i_))
    o.append(valu("v_lshlrev_b32", t0, 2, t0))
    o.append(valu("v_bfe_u32", t0, "s34", t0, 3))
    o.append(valu("v_xor_b32", t0, t0, g_))
    o.append(valu("v_lshl_add_u32", f"v{KA[0]}", t0, 4, t1))
    o.append(valu("v_xor_b32", f"v{KA[1]}", 64, f"v{KA[0]}"))
    o.append(valu("v_bfe_u32", t0, i_, 1, 2))
    o.append(valu("v_lshl_add_u32", t0, t0, 2, "s35"))
    o.append(valu("v_bfe_u32", t0, "s34", t0, 3))
    o.append(valu("v_xor_b32", t0, t0, g_))
    o.append(valu("v_lshl_add_u32", t0, t0, 4, t1))
    o.append(salu("s_add_u32", "s33", sWS, QST))
    o.append(valu("v_add_u32", f"v{T[10]}", "s33", t0))
    o.append(valu("v_xor_b32", f"v{T[11]}", 64, f"v{T[10]}"))
    o.append(valu("v_lshrrev_b32", t0, 2, i_))
    o.append(valu("v_lshl_add_u32", t0, g_, 2, t0))
    o.append(valu("v_lshrrev_b32", t2, 1, t0))
    o.append(valu("v_lshlrev_b32", t2, 2, t2))
    o.append(valu("v_bfe_u32", t2, "s34", t2, 3))
    o.append(valu("v_mul_u32_u24", t0, 384, t0))
    o.append(valu("v_bfe_u32", t1, i_, 1, 1))
    o.append(valu("v_xor_b32", t2, t2, t1))
    o.append(valu("v_lshl_add_u32", t0, t2, 4, t0))
    o.append(valu("v_and_b32", t1, 1, i_))
    o.append(valu("v_lshl_add_u32", t0, t1, 3, t0))
    o.append(valu("v_add_u32", f"v{VA[0]}", VRING, t0))
    for k in range(1, 4): o.append(valu("v_xor_b32", f"v{VA[k]}", 32 * k, f"v{VA[0]}"))
    if DIAG: o.append(valu("v_mov_b32", f"v{TS}", 0))
    o.append(wait(vm={Ktag(0)}))
    o.append(barrier())
    o += [kread(0, n) for n in range(12)]
    if DIAG: o += stamp(0)
    return o

def slow_path():
    o = []
    segs = []
    lane, i_, g_ = f"v{T[8]}", f"v{T[9]}", f"v{T[10]}"
    lin, tra = f"v{T[11]}", f"v{VA[0]}"
    o.append(label("L_slow"))
    o.append(raw("s_waitcnt vmcnt(0) lgkmcnt(0)", "salu"))
    o.append(valu("v_mbcnt_lo_u32_b32", lane, -1, 0))
    o.append(valu("v_mbcnt_hi_u32_b32", lane, -1, lane))
    o.append(valu("v_and_b32", i_, 15, lane))
    o.append(valu("v_lshrrev_b32", g_, 4, lane))
    o.append(valu("v_lshlrev_b32", lin, 4, lane))
    o.append(valu("v_lshrrev_b32", tra, 2, i_))
    o.append(valu("v_lshl_add_u32", tra, g_, 2, tra))
    o.append(valu("v_mul_u32_u24", tra, 384, tra))
    o.append(valu("v_and_b32", i_, 3, i_))
    o.append(valu("v_lshl_add_u32", tra, i_, 3, tra))
    o.append(salu("s_add_u32", "s69", sWS, QST))
    o.append(valu("v_add_u32", tra, "s69", tra))
    o.append(salu("s_mov_b32", "s68", 0))
    o.append(label("L_slow_combo"))
    o.append(salu("s_bitcmp1_b32", None, "s70", "s68"))
    o.append(raw("s_cbranch_scc0 L_slow_next", "branch"))
    o.append(salu("s_lshr_b32", "s71", "s68", 1))
    o.append(salu("s_and_b32", "s72", "s68", 1))
    o.append(salu("s_mul_i32", "s71", "s71", HEAD))
    o.append(salu("s_mul_i32", "s72", "s72", TILE))
    o.append(salu("s_add_u32", sT[0], sQB, "s71"))
    o.append(salu("s_add_u32", sT[0], sT[0], "s72"))
    o.append(salu("s_add_u32", sT[1], sT[0], 6144))
    o.append(salu("s_add_u32", "s73", "s31", "s71"))
    for qb in range(2):
        o += [bload(rr("a", QA(0, 0, qb, cc), 4), f"v{QV}", SQ, sT[qb], cc * 64) for cc in range(6)]
        o.append(valu("v_mov_b32", f"v{NM(0,qb)}", "0xff800000"))
        o.append(valu("v_mov_b32", f"v{L(0,qb)}", 0))
    for r in range(96): o.append(valu("v_mov_b32", f"v{r}", 0))
    o.append(raw("s_waitcnt vmcnt(0)", "salu"))
    o.append(salu("s_mov_b32", "s74", 0))
    o.append(label("L_slow_pass"))
    o.append(salu("s_mov_b32", "s75", "s73"))
    o.append(salu("s_add_u32", "s76", "s73", HEAD))
    o.append(label("L_slow_tile"))
    o.append(salu("s_add_u32", "s77", "s75", 6144))
    for kb in range(2):
        o += [bload(rr("a", KF(kb, cc), 4), f"v{QV}", SK, ("s75", "s77")[kb], cc * 64) for cc in range(6)]
    o.append(salu("s_mov_b32", "m0", "s69"))
    o.append(salu("s_mov_b32", "s77", "s75"))
    for k in range(3):
        o += [dma(lin, SVV, "s77", 1024 * j) for j in range(4)]
        if k < 2:
            o.append(salu("s_add_u32", "m0", "m0", 4096))
            o.append(salu("s_add_u32", "s77", "s77", 4096))
    o.append(raw("s_waitcnt vmcnt(0)", "salu"))
    o += [qk(0, 0, n) for n in range(24)]
    o.append(nop(8))
    o.append(salu("s_cmp_eq_u32", None, "s74", 0))
    o.append(raw("s_cbranch_scc0 L_slow_p2", "branch"))
    for qb in range(2):
        for r in range(0, 8, 2):
            o.append(valu("v_max3_f32", f"v{NM(0,qb)}", f"v{NM(0,qb)}", f"v{P(0,qb)+r}", f"v{P(0,qb)+r+1}"))
    o.append(raw("s_branch L_slow_tile_end", "branch"))
    o.append(label("L_slow_p2"))
    for n in range(24):
        db, h = divmod(n, 2)
        o.append(ds_read("ds_read_b64_tr_b16", rr("a", VF(db) + 2 * h, 2), tra, h * 6144 + db * 32))
        if n == 11: o.append(raw("s_waitcnt lgkmcnt(0)", "salu"))
    for c in range(4): o += [f_(0, c, r) for r in range(4)]
    for c in range(4): o += [e_(0, c, r) for r in range(4)]
    o.append(nop(1))
    for c in range(4): o += [a_(0, c, r) for r in range(4)]
    for c in range(4): o += [cv(0, c, 0), cv(0, c, 1)]
    o.append(raw("s_waitcnt lgkmcnt(0)", "salu"))
    o.append(nop(2))
    o += [pv(1, 0, n) for n in range(24)]
    o.append(label("L_slow_tile_end"))
    o.append(nop(8))
    o.append(salu("s_add_u32", "s75", "s75", TILE))
    o.append(salu("s_cmp_lt_u32", None, "s75", "s76"))
    o.append(raw("s_cbranch_scc1 L_slow_tile", "branch"))
    o.append(salu("s_cmp_eq_u32", None, "s74", 0))
    o.append(raw("s_cbranch_scc0 L_slow_fin", "branch"))
    mx = maxops(0)
    for qb in range(2): o += mx[qb][4:]
    o.append(salu("s_mov_b32", "s74", 1))
    o.append(raw("s_branch L_slow_pass", "branch"))
    o.append(label("L_slow_fin"))
    o += epi_head(0, 0) + epi_body(0, 0, False)
    o.append(raw("s_waitcnt vmcnt(0)", "salu"))
    o.append(label("L_slow_next"))
    o.append(salu("s_add_u32", "s68", "s68", 1))
    o.append(salu("s_cmp_lt_u32", None, "s68", 4))
    o.append(raw("s_cbranch_scc1 L_slow_combo", "branch"))
    o.append(raw("s_endpgm", "branch"))
    return o

def finish():
    o = []
    if DIAG:
        o.append(raw("s_waitcnt lgkmcnt(0)", "salu"))
        o += stamp_save(32)
        o.append(raw("s_memtime s[60:61]", "smem"))
        o.append(raw("s_waitcnt lgkmcnt(0)", "salu"))
        o += stamp_save(33)
        o.append(raw("s_waitcnt vmcnt(0)", "salu"))
        o.append(raw("s_memtime s[60:61]", "smem"))
        o.append(raw("s_memrealtime s[78:79]", "smem"))
        o.append(raw("s_waitcnt lgkmcnt(0)", "salu"))
        o += stamp_save(34)
        o.append(valu("v_writelane_b32", f"v{TS}", "s64", 40))
        o.append(valu("v_writelane_b32", f"v{TS}", "s66", 41))
        o.append(valu("v_writelane_b32", f"v{TS}", "s78", 42))
        o.append(salu("s_mov_b32", "s80", "s62"))
        o.append(salu("s_and_b32", "s81", "s63", "0xffff"))
        o.append(salu("s_mov_b32", "s82", "0x10000000"))
        o.append(salu("s_mov_b32", "s83", "0x20000"))
        o.append(salu("s_lshl_b32", "s84", "s2", 2))
        o.append(salu("s_add_u32", "s84", "s84", sW))
        o.append(salu("s_lshl_b32", "s84", "s84", 8))
        o.append(valu("v_mbcnt_lo_u32_b32", f"v{T[8]}", -1, 0))
        o.append(valu("v_mbcnt_hi_u32_b32", f"v{T[8]}", -1, f"v{T[8]}"))
        o.append(valu("v_lshlrev_b32", f"v{T[8]}", 2, f"v{T[8]}"))
        o.append(bstore(f"v{TS}", f"v{T[8]}", "s[80:83]", "s84", 0, op="buffer_store_dword"))
    if DBG:
        o.append(raw("s_load_dwordx2 s[62:63], s[0:1], 32", "smem"))
        o.append(raw("s_waitcnt lgkmcnt(0)", "salu"))
        o.append(salu("s_mov_b32", "s80", "s62"))
        o.append(salu("s_and_b32", "s81", "s63", "0xffff"))
        o.append(salu("s_mov_b32", "s82", "0x100"))
        o.append(salu("s_mov_b32", "s83", "0x20000"))
        tv = f"v{T[7]}"
        o.append(valu("v_mov_b32", tv, 0))
        o.append(salu("s_not_b32", "s85", "s66"))
        o.append(valu("v_writelane_b32", tv, "s85", 0))
        o.append(valu("v_writelane_b32", tv, "s78", 1))
        o.append(valu("v_writelane_b32", tv, "s66", 2))
        for n, i in enumerate((0, 2, 9, 17, 18, 25, 32, 33, 34)):
            o.append(valu("v_readlane_b32", "s85", f"v{TS}", i))
            o.append(nop(2))
            o.append(salu("s_sub_u32", "s85", "s85", "s64"))
            o.append(valu("v_writelane_b32", tv, "s85", 3 + n))
        o.append(salu("s_sub_u32", "s85", "s78", "s66"))
        o.append(valu("v_writelane_b32", tv, "s85", 12))
        o.append(raw("s_getreg_b32 s85, hwreg(HW_REG_XCC_ID)", "salu"))
        o.append(salu("s_and_b32", "s85", "s85", 7))
        o.append(salu("s_and_b32", "s86", "s2", 7))
        o.append(salu("s_xor_b32", "s85", "s85", "s86"))
        o.append(valu("v_writelane_b32", tv, "s85", 13))
        o.append(salu("s_mov_b32", "exec_lo", "0xffff"))
        o.append(salu("s_mov_b32", "exec_hi", 0))
        o.append(nop(2))
        o.append(raw(f"buffer_atomic_umax {tv}, v{T[8]}, s[80:83], 0 offen", "vst"))
        o.append(raw("s_waitcnt vmcnt(0)", "salu"))
        o.append(salu("s_mov_b64", "exec", -1))
    o.append(salu("s_mov_b32", "s70", 15 if FORCE_SLOW else 0))
    for combo in range(4):
        f0 = FLAG(combo >> 1, combo & 1, 0)
        o.append(salu("s_or_b64", "s[72:73]", f"s[{f0}:{f0+1}]", f"s[{f0+2}:{f0+3}]"))
        o.append(salu("s_cselect_b32", "s71", 1 << combo, 0))
        o.append(salu("s_or_b32", "s70", "s70", "s71"))
    o.append(raw("s_cbranch_scc1 L_slow", "branch"))
    o.append(label("L_end"))
    o.append(raw("s_endpgm", "branch"))
    return o

def build():
    tr = prologue()
    for t in range(33): tr += step(t)
    tr += finish()
    tr = insert_waits(tr)
    tr, added = fix_hazards(tr)
    errs, issued = verify(tr, private=lambda tag: tag == QBtag)
    for e in errs[:30]: print("ERR", e)
    assert not errs
    assert all(v == (12 if k == QBtag else 3) for k, v in issued.items()) and len(issued) == 65, issued
    cur = "pro"; seg = {}
    for ins in tr:
        if ins.t.startswith("; ----"): cur = ins.t[7:]
        seg.setdefault(cur, []).append(ins)
    tot = 0
    for k, s in seg.items():
        c = est_cycles(s); tot += c
        if k in ("pro", "step 0", "step 1", "step 2", "step 8", "step 15", "step 16", "step 17", "step 18", "step 31", "tail"):
            print(f"{k:8s} instrs {len(s):4d} est cycles {c:5d} nops {sum(1 for i in s if i.k=='nop')} waits {sum(1 for i in s if i.k=='wait')}")
    print("total est cycles", tot)
    sp, _ = fix_hazards(slow_path())
    return tr + sp

HDR = open("standalone__mha_softmax__near_ridge.s.ref").read().split("; @launch")[0]
def main():
    tr = build()
    o = [HDR + f"; @launch grid=(256,1,1) block=(256,1,1) lds={LDS_BYTES}",
         '.amdgcn_target "amdgcn-amd-amdhsa--gfx950"', ".text", f".globl {KN}", ".p2align 8",
         f".type {KN},@function", f"{KN}:"]
    for ins in tr: o.append(ins.t if ins.k == "label" else "  " + ins.t)
    o.append(f'''.section .rodata,"a"
.p2align 6
.amdhsa_kernel {KN}
  .amdhsa_next_free_vgpr 512
  .amdhsa_next_free_sgpr 102
  .amdhsa_accum_offset 256
  .amdhsa_group_segment_fixed_size 0
  .amdhsa_kernarg_size 48
  .amdhsa_user_sgpr_count 2
  .amdhsa_user_sgpr_kernarg_segment_ptr 1
  .amdhsa_system_sgpr_workgroup_id_x 1
.end_amdhsa_kernel''')
    open(sys.argv[1], "w").write("\n".join(o) + "\n")
main()
```

```python
import sys, struct, math
sys.path.insert(0, "gen")
from fw import *

OPT = dict(x.split("=") for x in sys.argv[2:])
DIAG = int(OPT.get("diag", 0))
DBG = int(OPT.get("dbg", 0))
FORCE_SLOW = int(OPT.get("force_slow", 0))
PK = int(OPT.get("pk", 1))
def _m(k): return "".join(" " + x for x in OPT.get(k, "").split("+") if x)
LM = _m("lm"); QM = _m("qm"); SM = _m("sm")
KN = "standalone__mha_softmax__near_ridge_kernel"

TILE = 12288; HEAD = 196608
NK = 4; NV = 4
KRING = 0; VRING = NK * TILE; QST = VRING + NV * TILE
LDS_BYTES = QST + 4 * TILE

def O(x, qb, db): return x * 96 + qb * 48 + db * 4
def S(x, c): return 192 + x * 16 + c * 4
def P(x, qb): return 192 + x * 16 + qb * 8
def L(x, qb): return 224 + 2 * x + qb
def NM(x, qb): return 228 + 2 * x + qb
KA = [232, 233]; VA = [234, 235, 236, 237]; DV = [238, 239, 240]
QV = 241; SV = 242
T = list(range(243, 255))
TS = 255
def QA(blk, x, qb, cc):
    base = 192 if (blk == 1 and x == 0) else x * 48
    return base + qb * 24 + cc * 4
def KF(kb, cc): return 96 + kb * 24 + cc * 4
def VF(db): return 144 + db * 4
SQ, SK, SVV, SO = "s[4:7]", "s[8:11]", "s[12:15]", "s[16:19]"
sKV, sWL, sC, sQB, sW, sTHR, sWS = "s20", "s21", "s22", "s23", "s29", "s28", "s30"
sT = ["s24", "s25", "s26", "s27"]
def FLAG(blk, x, qb): return 44 + 2 * (4 * blk + 2 * x + qb)
CBITS = struct.unpack("<I", struct.pack("<f", 192 ** -0.5 * math.log2(math.e)))[0]
THR = 0x4b800000

def Ktag(t): return (f"K{t}", ("K", t % NK))
def Vtag(t): return (f"V{t}", ("V", t % NV))
QBtag = ("QB", ("QB", 0))

def qk(t, x, n):
    c, cc = divmod(n, 6); qb, kb = divmod(c, 2)
    d = rr("v", S(x, c), 4)
    return mfma(d, rr("a", KF(kb, cc), 4), rr("a", QA(t >> 4, x, qb, cc), 4), d if cc else 0)
def pv(t, x, n):
    qb, db = divmod(n, 12)
    d = rr("v", O(x, qb, db), 4)
    return mfma(d, rr("a", VF(db), 4), rr("v", P(x, qb), 4), d if (t & 15) else 0)
def f_(x, c, r): return valu("v_fma_f32", f"v{S(x,c)+r}", f"v{S(x,c)+r}", sC, f"v{NM(x,c>>1)}")
def e_(x, c, r): return valu("v_exp_f32", f"v{S(x,c)+r}", f"v{S(x,c)+r}")
def a_(x, c, r, first=False):
    l = f"v{L(x,c>>1)}"
    if first and (c & 1) == 0 and r == 0: return valu("v_mov_b32", l, f"v{S(x,c)+r}")
    return valu("v_add_f32", l, l, f"v{S(x,c)+r}")
def cv(x, c, h):
    qb, kb = divmod(c, 2)
    return valu("v_cvt_pk_bf16_f32", f"v{P(x,qb)+2*kb+h}", f"v{S(x,c)+2*h}", f"v{S(x,c)+2*h+1}")
def kread(t, n):
    kb, cc = divmod(n, 6)
    return ds_read("ds_read_b128", rr("a", KF(kb, cc), 4), f"v{KA[cc&1]}", KRING + (t % NK) * TILE + kb * 6144 + (cc >> 1) * 128, lds=Ktag(t))
def vread(t, n):
    db, h = divmod(n, 2)
    return ds_read("ds_read_b64_tr_b16", rr("a", VF(db) + 2 * h, 2), f"v{VA[db&3]}", (t % NV) * TILE + h * 6144 + (db >> 2) * 128, lds=Vtag(t))
def m0_k(t): return salu("s_add_u32", "m0", sWL, KRING + (t % NK) * TILE)
def m0_v(t): return salu("s_add_u32", "m0", sWL, VRING + (t % NV) * TILE)
def dma_k(t, j): return dma(f"v{DV[j]}", SK, sKV, 1024 * j, lds=Ktag(t), mods=LM)
def dma_v(t, j): return dma(f"v{DV[j]}", SVV, sKV, 1024 * j, lds=Vtag(t), mods=LM)
def adv(): return salu("s_add_u32", sKV, sKV, TILE)

def maxops(x):
    res = []
    for qb in range(2):
        s = P(x, qb); m = f"v{NM(x,qb)}"; t = f"v{T[8+qb]}"
        res.append([
            valu("v_max3_f32", m, f"v{s}", f"v{s+1}", f"v{s+2}"),
            valu("v_max3_f32", t, f"v{s+3}", f"v{s+4}", f"v{s+5}"),
            valu("v_max3_f32", m, m, f"v{s+6}", f"v{s+7}"),
            valu("v_max_f32", m, m, t),
            valu("v_mov_b32", t, m),
            swap("v_permlane16_swap_b32", m, t),
            valu("v_max_f32", m, m, t),
            valu("v_mov_b32", t, m),
            swap("v_permlane32_swap_b32", m, t),
            valu("v_max_f32", m, m, t),
            valu("v_mul_f32_e64", m, m, "-" + sC),
        ])
    return res

def interleave(*ls):
    out = []; n = max(len(l) for l in ls)
    for i in range(n):
        for l in ls:
            if i < len(l): out.append(l[i])
    return out

def epi_head(blk, x):
    res = []
    for qb in range(2):
        l = f"v{L(x,qb)}"; r = f"v{T[2*x+qb]}"; t = f"v{T[4+2*x+qb]}"
        fl = FLAG(blk, x, qb)
        res.append([
            valu("v_mov_b32", t, l),
            valu("v_mov_b32", r, l),
            swap("v_permlane16_swap_b32", r, t),
            valu("v_add_f32", r, r, t),
            valu("v_mov_b32", t, r),
            swap("v_permlane32_swap_b32", r, t),
            valu("v_add_f32", r, r, t),
            valu("v_cmp_ngt_f32_e64", f"s[{fl}:{fl+1}]", sTHR, r),
            valu("v_rcp_f32", r, r),
        ])
    return interleave(*res)

def epi_unit(blk, x, qb, dp, pk, so):
    b = O(x, qb, 2 * dp); r = T[2 * x + qb]
    ops = []
    if pk:
        re_ = r & ~1
        sel = r & 1
        for i in range(4):
            ops.append(valu("v_pk_mul_f32", rr("v", b + 2 * i, 2), rr("v", b + 2 * i, 2), rr("v", re_, 2),
                            mods=f"op_sel:[0,{sel}] op_sel_hi:[1,{sel}]"))
    else:
        for i in range(8): ops.append(valu("v_mul_f32", f"v{b+i}", f"v{b+i}", f"v{r}"))
    for i in range(4): ops.append(valu("v_cvt_pk_bf16_f32", f"v{b+i}", f"v{b+2*i}", f"v{b+2*i+1}"))
    tail = [swap("v_permlane16_swap_b32", f"v{b}", f"v{b+2}"), swap("v_permlane16_swap_b32", f"v{b+1}", f"v{b+3}"),
            bstore(rr("v", b, 4), f"v{SV}", SO, so, 64 * dp, mods=SM)]
    return ops, tail

def epi_body(blk, x, pk, units=None):
    out = []; pend = []
    for qb in range(2):
        so = sT[2 * x + qb]
        for dp in range(6):
            if units is not None and (qb, dp) not in units: continue
            ops, tail = epi_unit(blk, x, qb, dp, pk, so)
            out += ops[:2] + pend[:2] + ops[2:4] + pend[2:] + ops[4:]
            pend = tail
    return out + pend

def epi_soff(blk, x):
    return [salu("s_add_u32", sT[2 * x + qb], sQB, blk * HEAD + x * TILE + qb * 6144) for qb in range(2)]

DMA_GAPS = [6, 11, 16, 21, 26, 31]
BAR_GAP = 4

def mfmas(t):
    m = []
    m += [qk(t, 0, n) for n in range(24)] if t < 32 else [None] * 24
    m += [pv(t - 1, 1, n) for n in range(24)] if t >= 1 else [None] * 24
    m += [qk(t, 1, n) for n in range(24)] if t < 32 else [None] * 24
    m += [pv(t, 0, n) for n in range(24)] if t < 32 else [None] * 24
    return m

def fixed(t, bar_gap=BAR_GAP, dma_gaps=DMA_GAPS):
    sc = {}; mem = {}
    need = set()
    if t < 32: need.add(Vtag(t))
    if t + 1 < 32: need.add(Ktag(t + 1))
    if t < 32:
        sc[bar_gap - 1] = wait(vm=need, lgkm=0)
        sc[bar_gap] = barrier()
    if t + NV - 1 < 32:
        sc[dma_gaps[0] - 1] = m0_v(t + NV - 1)
        for j in range(3): mem[dma_gaps[j]] = dma_v(t + NV - 1, j)
    if t + NK < 32:
        sc[dma_gaps[3] - 2] = adv()
        sc[dma_gaps[3] - 1] = m0_k(t + NK)
        for j in range(3): mem[dma_gaps[3 + j]] = dma_k(t + NK, j)
    if t < 32:
        for n in range(24): mem[36 + 3 * (n >> 1) + (n & 1)] = vread(t, n)
    if t + 1 < 32:
        for n in range(12): mem[72 + 2 * n] = kread(t + 1, n)
    return sc, mem

def btail(first):
    return [cv(1, 0, 0), cv(1, 0, 1), cv(1, 1, 0), cv(1, 1, 1)] + [a_(1, 2, r, first) for r in range(4)] + \
           [a_(1, 3, r) for r in range(4)] + [cv(1, 2, 0), cv(1, 2, 1), cv(1, 3, 0), cv(1, 3, 1)]

def steady_valu(t):
    v = {g: [] for g in range(96)}
    bt = btail(False)
    gs = [g for g in range(0, 9) if g not in DMA_GAPS]
    for i, g in enumerate(gs): v[g] = bt[2 * i:2 * i + 2]
    gs = [g for g in range(9, 36) if g not in DMA_GAPS] + [38, 41]
    i = 0
    for c in range(4):
        v[gs[i]] = [f_(0, c, 0), f_(0, c, 1)]; v[gs[i + 1]] = [f_(0, c, 2), f_(0, c, 3)]; i += 2
        for r in range(4): v[gs[i]] = [e_(0, c, r)]; i += 1
    sing = []
    for c in range(4): sing += [a_(0, c, r) for r in range(4)] + [cv(0, c, 0), cv(0, c, 1)]
    for g in range(36, 57):
        if g in (38, 41): continue
        n = 2 if (g - 36) % 3 == 2 else 1
        v[g] = sing[:n]; sing = sing[n:]
    assert not sing
    fs = [f_(1, c, r) for c in range(4) for r in range(4)] + [a_(1, 0, r) for r in range(4)] + [a_(1, 1, 0), a_(1, 1, 1)]
    sg = [57, 58, 60, 61, 63, 64, 66, 67, 69, 70] + list(range(72, 96, 2))
    for g, op in zip(sg, fs): v[g] = [op]
    eg = [59, 62, 65, 68, 71] + list(range(73, 95, 2))
    for g, op in zip(eg, [e_(1, c, r) for c in range(4) for r in range(4)]): v[g] = [op]
    v[95] = [a_(1, 1, 2), a_(1, 1, 3)]
    return v

def emit_gaps(m, sc, mem, v, extra=None):
    out = []
    for g in range(len(m)):
        if m[g] is not None: out.append(m[g])
        for d in (sc, mem):
            x = d.get(g)
            if x is None: continue
            out += x if isinstance(x, list) else [x]
        out += v.get(g, [])
        if extra and g in extra: out += extra[g]
    return out

def greedy(m, sc, mem, streams, drains):
    v = {}; pre = {}
    streams = [list(s) for s in streams]
    out = []
    for g in range(len(m)):
        for si, cnt in drains.get(g, []):
            s = streams[si]
            while s and len(s) > cnt: out.append(s.pop(0)[1])
        cap = 2
        if m[g] is not None: out.append(m[g])
        for d in (sc, mem):
            x = d.get(g)
            if x is None: continue
            x = x if isinstance(x, list) else [x]
            out += x
            if d is mem: cap -= sum(o.cost for o in x)
        prog = True
        while cap > 0 and prog:
            prog = False
            for s in streams:
                if s and s[0][0] <= g and s[0][1].cost <= cap:
                    op = s.pop(0)[1]; out.append(op); cap -= op.cost; prog = True; break
    for s in streams: assert not s, s
    return out

def at(g, ops): return [(g, o) for o in ops]

def soft_first(x, base):
    mx = maxops(x)
    s = at(base + 15, mx[0][:5]) + at(base + 16, mx[0][5:8]) + at(base + 17, mx[0][8:])
    s += at(base + 18, [f_(x, 0, r) for r in range(4)] + [e_(x, 0, r) for r in range(4)])
    s += at(base + 18, [f_(x, 1, r) for r in range(4)])
    s += at(base + 27, mx[1][:5]) + [(base + 27, e_(x, 1, 0))] + at(base + 27, mx[1][5:8]) + [(base + 27, e_(x, 1, 1))]
    s += at(base + 27, mx[1][8:]) + at(base + 27, [e_(x, 1, 2), e_(x, 1, 3)])
    for c in (2, 3): s += at(base + 27, [f_(x, c, r) for r in range(4)] + [e_(x, c, r) for r in range(4)])
    if x == 0:
        for c in range(4): s += at(base + 27, [a_(x, c, r, True) for r in range(4)] + [cv(x, c, 0), cv(x, c, 1)])
    else:
        s += at(base + 27, [a_(x, 0, r, True) for r in range(4)] + [a_(x, 1, r) for r in range(4)])
    return s

def qprime(t):
    sc = {}; ex = {}
    if 2 <= t <= 7:
        n0 = 2 * (t - 2); qb = n0 // 6
        sc[39] = salu("s_add_u32", sT[0], sQB, HEAD + qb * 6144)
        for i, g in enumerate((44, 62)):
            cc = (n0 + i) % 6
            ex[g] = [bload(rr("a", QA(1, 0, qb, cc), 4), f"v{QV}", SQ, sT[0], cc * 64, mods=QM)]
    if 8 <= t <= 11:
        gi = t - 8
        sc[39] = salu("s_add_u32", sT[0], sQB, HEAD + TILE + gi * 3072)
        sc[42] = salu("s_add_u32", "m0", sWS, QST + gi * 3072)
        for j, g in enumerate((44, 56, 68)):
            ex[g] = [dma(f"v{DV[j]}", SQ, sT[0], 1024 * j, lds=QBtag, mods=QM)]
    return sc, ex

def stamp(i):
    return [raw("s_memtime s[60:61]", "smem", wr=["s60", "s61"])]
def stamp_save(i):
    return [valu("v_writelane_b32", f"v{TS}", "s60", i)]

def step(t):
    m = mfmas(t)
    first = (t & 15) == 0
    if not first:
        sc, mem = fixed(t)
        v = steady_valu(t)
        if (t & 15) == 1:
            bt = btail(True)
            gs = [g for g in range(0, 9) if g not in DMA_GAPS]
            for i, g in enumerate(gs): v[g] = bt[2 * i:2 * i + 2]
        qs, ex = qprime(t)
        for g, o in qs.items(): assert g not in sc; sc[g] = o
        for g, o in ex.items():
            assert g not in mem; mem[g] = o
        ex = {}
        if DIAG: ex[BAR_GAP] = stamp_save(t) + stamp(t + 1)
        return [comment(f"---- step {t}")] + emit_gaps(m, sc, mem, v, ex)
    if t == 0:
        sc, mem = fixed(0, bar_gap=30, dma_gaps=[32, 33, 34, 38, 41, 44])
        if DIAG: sc[30] = [sc[30]] + stamp_save(0) + stamp(1)
        A = soft_first(0, 0); B = soft_first(1, 48)
        return [comment("---- step 0")] + greedy(m, sc, mem, [A, B], {72: [(0, 0)], 95: [(1, 0)]})
    if t == 16:
        sc, mem = fixed(16)
        if DIAG: sc[BAR_GAP] = [sc[BAR_GAP]] + stamp_save(16) + stamp(17)
        free = [g for g in range(0, 36) if g not in mem and g >= 7][:12]
        for n, g in enumerate(free):
            qb, cc = divmod(n, 6)
            mem[g] = ds_read("ds_read_b128", rr("a", QA(1, 1, qb, cc), 4), f"v{T[10+(cc&1)]}", qb * 6144 + (cc >> 1) * 128, lds=QBtag)
        bt = at(0, btail(False))
        EA = at(4, epi_soff(0, 0) + epi_head(0, 0)) + at(4, epi_body(0, 0, False, {(0, 0), (0, 1)}))
        EA2 = at(999, epi_body(0, 0, PK, {(q, d) for q in range(2) for d in range(6)} - {(0, 0), (0, 1)}))
        A = soft_first(0, 0)
        EB = at(10, epi_soff(0, 1) + epi_head(0, 1))
        EB2 = at(999, epi_body(0, 1, PK))
        B = soft_first(1, 48)
        return [comment("---- step 16")] + greedy(m, sc, mem, [bt, A, EA, EA2, EB, B, EB2],
                 {24: [(0, 0), (2, 0), (3, 0), (4, 0)], 72: [(1, 0), (6, 0)], 95: [(5, 0)]})
    if t == 32:
        m = mfmas(32)[24:48]
        out = [comment("---- tail")] + btail(False) + epi_soff(1, 0) + epi_soff(1, 1)
        first_units = {(0, 0), (0, 1)}
        EA = at(0, epi_head(1, 0) + epi_body(1, 0, False, first_units))
        EB = at(0, epi_head(1, 1))
        out += greedy(m + [None], {}, {}, [EA, EB], {24: [(0, 0), (1, 0)]})
        out += epi_body(1, 0, PK, {(q, d) for q in range(2) for d in range(6)} - first_units)
        out += epi_body(1, 1, PK)
        return out

def prologue():
    o = []
    o.append(raw("s_load_dwordx8 s[36:43], s[0:1], 0", "smem", wr=R("s", 36, 8)))
    if DIAG:
        o.append(raw("s_load_dwordx2 s[62:63], s[0:1], 40", "smem", wr=["s62", "s63"]))
        o.append(raw("s_memtime s[64:65]", "smem", wr=["s64", "s65"]))
        o.append(raw("s_memrealtime s[66:67]", "smem", wr=["s66", "s67"]))
    o.append(salu("s_cmp_ge_u32", None, "s2", 256))
    o.append(raw("s_cbranch_scc1 L_end", "branch"))
    lane, i_, g_, t0, t1, t2 = "v1", "v2", "v3", "v4", "v5", "v6"
    o.append(valu("v_lshrrev_b32", t0, 6, "v0"))
    o.append(valu("v_and_b32", lane, 63, "v0"))
    o.append(valu("v_readfirstlane_b32", sW, t0))
    o.append(valu("v_and_b32", i_, 15, lane))
    o.append(valu("v_lshrrev_b32", g_, 4, lane))
    if OPT.get("map") == "adj":
        o.append(salu("s_lshr_b32", "s31", "s2", 1))
        o.append(salu("s_and_b32", "s32", "s2", 1))
    else:
        o.append(salu("s_and_b32", "s31", "s2", 7))
        o.append(salu("s_lshr_b32", "s32", "s2", 3))
        o.append(salu("s_lshl_b32", "s31", "s31", 4))
        o.append(salu("s_lshr_b32", "s33", "s32", 1))
        o.append(salu("s_add_u32", "s31", "s31", "s33"))
        o.append(salu("s_and_b32", "s32", "s32", 1))
    o.append(salu("s_mul_i32", "s31", "s31", 2 * HEAD))
    o.append(salu("s_mul_i32", sWL, sW, 3072))
    o.append(salu("s_mul_i32", sWS, sW, TILE))
    o.append(salu("s_add_u32", sKV, "s31", sWL))
    o.append(salu("s_mul_i32", "s32", "s32", 256 * 384))
    o.append(salu("s_mul_i32", "s33", sW, 64 * 384))
    o.append(salu("s_add_u32", sQB, "s31", "s32"))
    o.append(salu("s_add_u32", sQB, sQB, "s33"))
    o.append(salu("s_mov_b32", sC, hex(CBITS)))
    o.append(salu("s_mov_b32", sTHR, hex(THR)))
    o.append(salu("s_mov_b32", "s34", "0x31756420"))
    o.append(salu("s_and_b32", "s35", sW, 1))
    o.append(salu("s_lshl_b32", "s35", "s35", 4))
    o.append(valu("v_lshlrev_b32", t2, 4, lane))
    for j in range(3):
        o.append(valu("v_add_u32", t0, 64 * j, lane))
        o.append(valu("v_mul_u32_u24", t0, 171, t0))
        o.append(valu("v_lshrrev_b32", t0, 13, t0))
        o.append(valu("v_lshl_add_u32", t0, t0, 2, "s35"))
        o.append(valu("v_bfe_u32", t0, "s34", t0, 3))
        o.append(valu("v_lshlrev_b32", t0, 4, t0))
        o.append(valu("v_xor_b32", f"v{DV[j]}", t0, t2))
    o.append(valu("v_mul_u32_u24", t1, 384, i_))
    o.append(valu("v_lshl_add_u32", f"v{QV}", g_, 4, t1))
    o.append(raw("s_waitcnt lgkmcnt(0)", "salu"))
    for base, src in ((4, 36), (8, 38), (12, 40), (16, 42)):
        o.append(salu("s_mov_b32", f"s{base}", f"s{src}"))
        o.append(salu("s_and_b32", f"s{base+1}", f"s{src+1}", "0xffff"))
        o.append(salu("s_mov_b32", f"s{base+2}", "0x3000000"))
        o.append(salu("s_mov_b32", f"s{base+3}", "0x20000"))
    def kd(t): return [m0_k(t), nop(1)] + [dma_k(t, j) for j in range(3)]
    def vd(t): return [m0_v(t), nop(1)] + [dma_v(t, j) for j in range(3)]
    def qd(x):
        r = []
        for qb in range(2):
            r.append(salu("s_add_u32", sT[qb], sQB, x * TILE + qb * 6144))
            r += [bload(rr("a", QA(0, x, qb, cc), 4), f"v{QV}", SQ, sT[qb], cc * 64, mods=QM) for cc in range(6)]
        return r
    o += kd(0) + qd(0) + qd(1)
    for t in range(NV - 1):
        o += vd(t) + [adv()] + kd(t + 1)
    o.append(valu("v_and_b32", t0, 1, g_))
    o.append(valu("v_lshl_add_u32", t0, t0, 5, t1))
    o.append(valu("v_lshrrev_b32", t2, 1, g_))
    o.append(valu("v_lshl_add_u32", f"v{SV}", t2, 4, t0))
    o.append(valu("v_lshrrev_b32", t0, 1, i_))
    o.append(valu("v_lshlrev_b32", t0, 2, t0))
    o.append(valu("v_bfe_u32", t0, "s34", t0, 3))
    o.append(valu("v_xor_b32", t0, t0, g_))
    o.append(valu("v_lshl_add_u32", f"v{KA[0]}", t0, 4, t1))
    o.append(valu("v_xor_b32", f"v{KA[1]}", 64, f"v{KA[0]}"))
    o.append(valu("v_bfe_u32", t0, i_, 1, 2))
    o.append(valu("v_lshl_add_u32", t0, t0, 2, "s35"))
    o.append(valu("v_bfe_u32", t0, "s34", t0, 3))
    o.append(valu("v_xor_b32", t0, t0, g_))
    o.append(valu("v_lshl_add_u32", t0, t0, 4, t1))
    o.append(salu("s_add_u32", "s33", sWS, QST))
    o.append(valu("v_add_u32", f"v{T[10]}", "s33", t0))
    o.append(valu("v_xor_b32", f"v{T[11]}", 64, f"v{T[10]}"))
    o.append(valu("v_lshrrev_b32", t0, 2, i_))
    o.append(valu("v_lshl_add_u32", t0, g_, 2, t0))
    o.append(valu("v_lshrrev_b32", t2, 1, t0))
    o.append(valu("v_lshlrev_b32", t2, 2, t2))
    o.append(valu("v_bfe_u32", t2, "s34", t2, 3))
    o.append(valu("v_mul_u32_u24", t0, 384, t0))
    o.append(valu("v_bfe_u32", t1, i_, 1, 1))
    o.append(valu("v_xor_b32", t2, t2, t1))
    o.append(valu("v_lshl_add_u32", t0, t2, 4, t0))
    o.append(valu("v_and_b32", t1, 1, i_))
    o.append(valu("v_lshl_add_u32", t0, t1, 3, t0))
    o.append(valu("v_add_u32", f"v{VA[0]}", VRING, t0))
    for k in range(1, 4): o.append(valu("v_xor_b32", f"v{VA[k]}", 32 * k, f"v{VA[0]}"))
    if DIAG: o.append(valu("v_mov_b32", f"v{TS}", 0))
    o.append(wait(vm={Ktag(0)}))
    o.append(barrier())
    o += [kread(0, n) for n in range(12)]
    if DIAG: o += stamp(0)
    return o

def slow_path():
    o = []
    segs = []
    lane, i_, g_ = f"v{T[8]}", f"v{T[9]}", f"v{T[10]}"
    lin, tra = f"v{T[11]}", f"v{VA[0]}"
    o.append(label("L_slow"))
    o.append(raw("s_waitcnt vmcnt(0) lgkmcnt(0)", "salu"))
    o.append(valu("v_mbcnt_lo_u32_b32", lane, -1, 0))
    o.append(valu("v_mbcnt_hi_u32_b32", lane, -1, lane))
    o.append(valu("v_and_b32", i_, 15, lane))
    o.append(valu("v_lshrrev_b32", g_, 4, lane))
    o.append(valu("v_lshlrev_b32", lin, 4, lane))
    o.append(valu("v_lshrrev_b32", tra, 2, i_))
    o.append(valu("v_lshl_add_u32", tra, g_, 2, tra))
    o.append(valu("v_mul_u32_u24", tra, 384, tra))
    o.append(valu("v_and_b32", i_, 3, i_))
    o.append(valu("v_lshl_add_u32", tra, i_, 3, tra))
    o.append(salu("s_add_u32", "s69", sWS, QST))
    o.append(valu("v_add_u32", tra, "s69", tra))
    o.append(salu("s_mov_b32", "s68", 0))
    o.append(label("L_slow_combo"))
    o.append(salu("s_bitcmp1_b32", None, "s70", "s68"))
    o.append(raw("s_cbranch_scc0 L_slow_next", "branch"))
    o.append(salu("s_lshr_b32", "s71", "s68", 1))
    o.append(salu("s_and_b32", "s72", "s68", 1))
    o.append(salu("s_mul_i32", "s71", "s71", HEAD))
    o.append(salu("s_mul_i32", "s72", "s72", TILE))
    o.append(salu("s_add_u32", sT[0], sQB, "s71"))
    o.append(salu("s_add_u32", sT[0], sT[0], "s72"))
    o.append(salu("s_add_u32", sT[1], sT[0], 6144))
    o.append(salu("s_add_u32", "s73", "s31", "s71"))
    for qb in range(2):
        o += [bload(rr("a", QA(0, 0, qb, cc), 4), f"v{QV}", SQ, sT[qb], cc * 64) for cc in range(6)]
        o.append(valu("v_mov_b32", f"v{NM(0,qb)}", "0xff800000"))
        o.append(valu("v_mov_b32", f"v{L(0,qb)}", 0))
    for r in range(96): o.append(valu("v_mov_b32", f"v{r}", 0))
    o.append(raw("s_waitcnt vmcnt(0)", "salu"))
    o.append(salu("s_mov_b32", "s74", 0))
    o.append(label("L_slow_pass"))
    o.append(salu("s_mov_b32", "s75", "s73"))
    o.append(salu("s_add_u32", "s76", "s73", HEAD))
    o.append(label("L_slow_tile"))
    o.append(salu("s_add_u32", "s77", "s75", 6144))
    for kb in range(2):
        o += [bload(rr("a", KF(kb, cc), 4), f"v{QV}", SK, ("s75", "s77")[kb], cc * 64) for cc in range(6)]
    o.append(salu("s_mov_b32", "m0", "s69"))
    o.append(salu("s_mov_b32", "s77", "s75"))
    for k in range(3):
        o += [dma(lin, SVV, "s77", 1024 * j) for j in range(4)]
        if k < 2:
            o.append(salu("s_add_u32", "m0", "m0", 4096))
            o.append(salu("s_add_u32", "s77", "s77", 4096))
    o.append(raw("s_waitcnt vmcnt(0)", "salu"))
    o += [qk(0, 0, n) for n in range(24)]
    o.append(nop(8))
    o.append(salu("s_cmp_eq_u32", None, "s74", 0))
    o.append(raw("s_cbranch_scc0 L_slow_p2", "branch"))
    for qb in range(2):
        for r in range(0, 8, 2):
            o.append(valu("v_max3_f32", f"v{NM(0,qb)}", f"v{NM(0,qb)}", f"v{P(0,qb)+r}", f"v{P(0,qb)+r+1}"))
    o.append(raw("s_branch L_slow_tile_end", "branch"))
    o.append(label("L_slow_p2"))
    for n in range(24):
        db, h = divmod(n, 2)
        o.append(ds_read("ds_read_b64_tr_b16", rr("a", VF(db) + 2 * h, 2), tra, h * 6144 + db * 32))
        if n == 11: o.append(raw("s_waitcnt lgkmcnt(0)", "salu"))
    for c in range(4): o += [f_(0, c, r) for r in range(4)]
    for c in range(4): o += [e_(0, c, r) for r in range(4)]
    o.append(nop(1))
    for c in range(4): o += [a_(0, c, r) for r in range(4)]
    for c in range(4): o += [cv(0, c, 0), cv(0, c, 1)]
    o.append(raw("s_waitcnt lgkmcnt(0)", "salu"))
    o.append(nop(2))
    o += [pv(1, 0, n) for n in range(24)]
    o.append(label("L_slow_tile_end"))
    o.append(nop(8))
    o.append(salu("s_add_u32", "s75", "s75", TILE))
    o.append(salu("s_cmp_lt_u32", None, "s75", "s76"))
    o.append(raw("s_cbranch_scc1 L_slow_tile", "branch"))
    o.append(salu("s_cmp_eq_u32", None, "s74", 0))
    o.append(raw("s_cbranch_scc0 L_slow_fin", "branch"))
    mx = maxops(0)
    for qb in range(2): o += mx[qb][4:]
    o.append(salu("s_mov_b32", "s74", 1))
    o.append(raw("s_branch L_slow_pass", "branch"))
    o.append(label("L_slow_fin"))
    o += epi_head(0, 0) + epi_body(0, 0, False)
    o.append(raw("s_waitcnt vmcnt(0)", "salu"))
    o.append(label("L_slow_next"))
    o.append(salu("s_add_u32", "s68", "s68", 1))
    o.append(salu("s_cmp_lt_u32", None, "s68", 4))
    o.append(raw("s_cbranch_scc1 L_slow_combo", "branch"))
    o.append(raw("s_endpgm", "branch"))
    return o

def finish():
    o = []
    if DIAG:
        o.append(raw("s_waitcnt lgkmcnt(0)", "salu"))
        o += stamp_save(32)
        o.append(raw("s_memtime s[60:61]", "smem"))
        o.append(raw("s_waitcnt lgkmcnt(0)", "salu"))
        o += stamp_save(33)
        o.append(raw("s_waitcnt vmcnt(0)", "salu"))
        o.append(raw("s_memtime s[60:61]", "smem"))
        o.append(raw("s_memrealtime s[78:79]", "smem"))
        o.append(raw("s_waitcnt lgkmcnt(0)", "salu"))
        o += stamp_save(34)
        o.append(valu("v_writelane_b32", f"v{TS}", "s64", 40))
        o.append(valu("v_writelane_b32", f"v{TS}", "s66", 41))
        o.append(valu("v_writelane_b32", f"v{TS}", "s78", 42))
        o.append(salu("s_mov_b32", "s80", "s62"))
        o.append(salu("s_and_b32", "s81", "s63", "0xffff"))
        o.append(salu("s_mov_b32", "s82", "0x10000000"))
        o.append(salu("s_mov_b32", "s83", "0x20000"))
        o.append(salu("s_lshl_b32", "s84", "s2", 2))
        o.append(salu("s_add_u32", "s84", "s84", sW))
        o.append(salu("s_lshl_b32", "s84", "s84", 8))
        o.append(valu("v_mbcnt_lo_u32_b32", f"v{T[8]}", -1, 0))
        o.append(valu("v_mbcnt_hi_u32_b32", f"v{T[8]}", -1, f"v{T[8]}"))
        o.append(valu("v_lshlrev_b32", f"v{T[8]}", 2, f"v{T[8]}"))
        o.append(bstore(f"v{TS}", f"v{T[8]}", "s[80:83]", "s84", 0, op="buffer_store_dword"))
    if DBG:
        o.append(raw("s_load_dwordx2 s[62:63], s[0:1], 32", "smem"))
        o.append(raw("s_waitcnt lgkmcnt(0)", "salu"))
        o.append(salu("s_mov_b32", "s80", "s62"))
        o.append(salu("s_and_b32", "s81", "s63", "0xffff"))
        o.append(salu("s_mov_b32", "s82", "0x100"))
        o.append(salu("s_mov_b32", "s83", "0x20000"))
        tv = f"v{T[7]}"
        o.append(valu("v_mov_b32", tv, 0))
        o.append(salu("s_not_b32", "s85", "s66"))
        o.append(valu("v_writelane_b32", tv, "s85", 0))
        o.append(valu("v_writelane_b32", tv, "s78", 1))
        o.append(valu("v_writelane_b32", tv, "s66", 2))
        for n, i in enumerate((0, 2, 9, 17, 18, 25, 32, 33, 34)):
            o.append(valu("v_readlane_b32", "s85", f"v{TS}", i))
            o.append(nop(2))
            o.append(salu("s_sub_u32", "s85", "s85", "s64"))
            o.append(valu("v_writelane_b32", tv, "s85", 3 + n))
        o.append(salu("s_sub_u32", "s85", "s78", "s66"))
        o.append(valu("v_writelane_b32", tv, "s85", 12))
        o.append(raw("s_getreg_b32 s85, hwreg(HW_REG_XCC_ID)", "salu"))
        o.append(salu("s_and_b32", "s85", "s85", 7))
        o.append(salu("s_and_b32", "s86", "s2", 7))
        o.append(salu("s_xor_b32", "s85", "s85", "s86"))
        o.append(valu("v_writelane_b32", tv, "s85", 13))
        o.append(salu("s_mov_b32", "exec_lo", "0xffff"))
        o.append(salu("s_mov_b32", "exec_hi", 0))
        o.append(nop(2))
        o.append(raw(f"buffer_atomic_umax {tv}, v{T[8]}, s[80:83], 0 offen", "vst"))
        o.append(raw("s_waitcnt vmcnt(0)", "salu"))
        o.append(salu("s_mov_b64", "exec", -1))
    o.append(salu("s_mov_b32", "s70", 15 if FORCE_SLOW else 0))
    for combo in range(4):
        f0 = FLAG(combo >> 1, combo & 1, 0)
        o.append(salu("s_or_b64", "s[72:73]", f"s[{f0}:{f0+1}]", f"s[{f0+2}:{f0+3}]"))
        o.append(salu("s_cselect_b32", "s71", 1 << combo, 0))
        o.append(salu("s_or_b32", "s70", "s70", "s71"))
    o.append(raw("s_cbranch_scc1 L_slow", "branch"))
    o.append(label("L_end"))
    o.append(raw("s_endpgm", "branch"))
    return o

def build():
    tr = prologue()
    for t in range(33): tr += step(t)
    tr += finish()
    tr = insert_waits(tr)
    tr, added = fix_hazards(tr)
    errs, issued = verify(tr, private=lambda tag: tag == QBtag)
    for e in errs[:30]: print("ERR", e)
    assert not errs
    assert all(v == (12 if k == QBtag else 3) for k, v in issued.items()) and len(issued) == 65, issued
    cur = "pro"; seg = {}
    for ins in tr:
        if ins.t.startswith("; ----"): cur = ins.t[7:]
        seg.setdefault(cur, []).append(ins)
    tot = 0
    for k, s in seg.items():
        c = est_cycles(s); tot += c
        if k in ("pro", "step 0", "step 1", "step 2", "step 8", "step 15", "step 16", "step 17", "step 18", "step 31", "tail"):
            print(f"{k:8s} instrs {len(s):4d} est cycles {c:5d} nops {sum(1 for i in s if i.k=='nop')} waits {sum(1 for i in s if i.k=='wait')}")
    print("total est cycles", tot)
    sp, _ = fix_hazards(slow_path())
    return tr + sp

HDR = open("standalone__mha_softmax__near_ridge.s.ref").read().split("; @launch")[0]
def main():
    tr = build()
    o = [HDR + f"; @launch grid=(256,1,1) block=(256,1,1) lds={LDS_BYTES}",
         '.amdgcn_target "amdgcn-amd-amdhsa--gfx950"', ".text", f".globl {KN}", ".p2align 8",
         f".type {KN},@function", f"{KN}:"]
    for ins in tr: o.append(ins.t if ins.k == "label" else "  " + ins.t)
    o.append(f'''.section .rodata,"a"
.p2align 6
.amdhsa_kernel {KN}
  .amdhsa_next_free_vgpr 512
  .amdhsa_next_free_sgpr 102
  .amdhsa_accum_offset 256
  .amdhsa_group_segment_fixed_size 0
  .amdhsa_kernarg_size 48
  .amdhsa_user_sgpr_count 2
  .amdhsa_user_sgpr_kernarg_segment_ptr 1
  .amdhsa_system_sgpr_workgroup_id_x 1
.end_amdhsa_kernel''')
    open(sys.argv[1], "w").write("\n".join(o) + "\n")
main()
```

```python
import sys, struct, math
sys.path.insert(0, "gen")
from fw import *

OPT = dict(x.split("=") for x in sys.argv[2:])
DIAG = int(OPT.get("diag", 0))
DBG = int(OPT.get("dbg", 0))
SPIN = int(OPT.get("spin", 0))
FORCE_SLOW = int(OPT.get("force_slow", 0))
PK = int(OPT.get("pk", 1))
def _m(k): return "".join(" " + x for x in OPT.get(k, "").split("+") if x)
LM = _m("lm"); QM = _m("qm"); SM = _m("sm")
KN = "standalone__mha_softmax__near_ridge_kernel"

TILE = 12288; HEAD = 196608
NK = 4; NV = 4
KRING = 0; VRING = NK * TILE; QST = VRING + NV * TILE
LDS_BYTES = QST + 4 * TILE

def O(x, qb, db): return x * 96 + qb * 48 + db * 4
def S(x, c): return 192 + x * 16 + c * 4
def P(x, qb): return 192 + x * 16 + qb * 8
def L(x, qb): return 224 + 2 * x + qb
def NM(x, qb): return 228 + 2 * x + qb
KA = [232, 233]; VA = [234, 235, 236, 237]; DV = [238, 239, 240]
QV = 241; SV = 242
T = list(range(243, 255))
TS = 255
def QA(blk, x, qb, cc):
    base = 192 if (blk == 1 and x == 0) else x * 48
    return base + qb * 24 + cc * 4
def KF(kb, cc): return 96 + kb * 24 + cc * 4
def VF(db): return 144 + db * 4
SQ, SK, SVV, SO = "s[4:7]", "s[8:11]", "s[12:15]", "s[16:19]"
sKV, sWL, sC, sQB, sW, sTHR, sWS = "s20", "s21", "s22", "s23", "s29", "s28", "s30"
sT = ["s24", "s25", "s26", "s27"]
def FLAG(blk, x, qb): return 44 + 2 * (4 * blk + 2 * x + qb)
CBITS = struct.unpack("<I", struct.pack("<f", 192 ** -0.5 * math.log2(math.e)))[0]
THR = 0x4b800000

def Ktag(t): return (f"K{t}", ("K", t % NK))
def Vtag(t): return (f"V{t}", ("V", t % NV))
QBtag = ("QB", ("QB", 0))

def qk(t, x, n):
    c, cc = divmod(n, 6); qb, kb = divmod(c, 2)
    d = rr("v", S(x, c), 4)
    return mfma(d, rr("a", KF(kb, cc), 4), rr("a", QA(t >> 4, x, qb, cc), 4), d if cc else 0)
def pv(t, x, n):
    qb, db = divmod(n, 12)
    d = rr("v", O(x, qb, db), 4)
    return mfma(d, rr("a", VF(db), 4), rr("v", P(x, qb), 4), d if (t & 15) else 0)
def f_(x, c, r): return valu("v_fma_f32", f"v{S(x,c)+r}", f"v{S(x,c)+r}", sC, f"v{NM(x,c>>1)}")
def e_(x, c, r): return valu("v_exp_f32", f"v{S(x,c)+r}", f"v{S(x,c)+r}")
def a_(x, c, r, first=False):
    l = f"v{L(x,c>>1)}"
    if first and (c & 1) == 0 and r == 0: return valu("v_mov_b32", l, f"v{S(x,c)+r}")
    return valu("v_add_f32", l, l, f"v{S(x,c)+r}")
def cv(x, c, h):
    qb, kb = divmod(c, 2)
    return valu("v_cvt_pk_bf16_f32", f"v{P(x,qb)+2*kb+h}", f"v{S(x,c)+2*h}", f"v{S(x,c)+2*h+1}")
def kread(t, n):
    kb, cc = divmod(n, 6)
    return ds_read("ds_read_b128", rr("a", KF(kb, cc), 4), f"v{KA[cc&1]}", KRING + (t % NK) * TILE + kb * 6144 + (cc >> 1) * 128, lds=Ktag(t))
def vread(t, n):
    db, h = divmod(n, 2)
    return ds_read("ds_read_b64_tr_b16", rr("a", VF(db) + 2 * h, 2), f"v{VA[db&3]}", (t % NV) * TILE + h * 6144 + (db >> 2) * 128, lds=Vtag(t))
def m0_k(t): return salu("s_add_u32", "m0", sWL, KRING + (t % NK) * TILE)
def m0_v(t): return salu("s_add_u32", "m0", sWL, VRING + (t % NV) * TILE)
def dma_k(t, j): return dma(f"v{DV[j]}", SK, sKV, 1024 * j, lds=Ktag(t), mods=LM)
def dma_v(t, j): return dma(f"v{DV[j]}", SVV, sKV, 1024 * j, lds=Vtag(t), mods=LM)
def adv(): return salu("s_add_u32", sKV, sKV, TILE)

def maxops(x):
    res = []
    for qb in range(2):
        s = P(x, qb); m = f"v{NM(x,qb)}"; t = f"v{T[8+qb]}"
        res.append([
            valu("v_max3_f32", m, f"v{s}", f"v{s+1}", f"v{s+2}"),
            valu("v_max3_f32", t, f"v{s+3}", f"v{s+4}", f"v{s+5}"),
            valu("v_max3_f32", m, m, f"v{s+6}", f"v{s+7}"),
            valu("v_max_f32", m, m, t),
            valu("v_mov_b32", t, m),
            swap("v_permlane16_swap_b32", m, t),
            valu("v_max_f32", m, m, t),
            valu("v_mov_b32", t, m),
            swap("v_permlane32_swap_b32", m, t),
            valu("v_max_f32", m, m, t),
            valu("v_mul_f32_e64", m, m, "-" + sC),
        ])
    return res

def interleave(*ls):
    out = []; n = max(len(l) for l in ls)
    for i in range(n):
        for l in ls:
            if i < len(l): out.append(l[i])
    return out

def epi_head(blk, x):
    res = []
    for qb in range(2):
        l = f"v{L(x,qb)}"; r = f"v{T[2*x+qb]}"; t = f"v{T[4+2*x+qb]}"
        fl = FLAG(blk, x, qb)
        res.append([
            valu("v_mov_b32", t, l),
            valu("v_mov_b32", r, l),
            swap("v_permlane16_swap_b32", r, t),
            valu("v_add_f32", r, r, t),
            valu("v_mov_b32", t, r),
            swap("v_permlane32_swap_b32", r, t),
            valu("v_add_f32", r, r, t),
            valu("v_cmp_ngt_f32_e64", f"s[{fl}:{fl+1}]", sTHR, r),
            valu("v_rcp_f32", r, r),
        ])
    return interleave(*res)

def epi_unit(blk, x, qb, dp, pk, so):
    b = O(x, qb, 2 * dp); r = T[2 * x + qb]
    ops = []
    if pk:
        re_ = r & ~1
        sel = r & 1
        for i in range(4):
            ops.append(valu("v_pk_mul_f32", rr("v", b + 2 * i, 2), rr("v", b + 2 * i, 2), rr("v", re_, 2),
                            mods=f"op_sel:[0,{sel}] op_sel_hi:[1,{sel}]"))
    else:
        for i in range(8): ops.append(valu("v_mul_f32", f"v{b+i}", f"v{b+i}", f"v{r}"))
    for i in range(4): ops.append(valu("v_cvt_pk_bf16_f32", f"v{b+i}", f"v{b+2*i}", f"v{b+2*i+1}"))
    tail = [swap("v_permlane16_swap_b32", f"v{b}", f"v{b+2}"), swap("v_permlane16_swap_b32", f"v{b+1}", f"v{b+3}"),
            bstore(rr("v", b, 4), f"v{SV}", SO, so, 64 * dp, mods=SM)]
    return ops, tail

def epi_body(blk, x, pk, units=None):
    out = []; pend = []
    for qb in range(2):
        so = sT[2 * x + qb]
        for dp in range(6):
            if units is not None and (qb, dp) not in units: continue
            ops, tail = epi_unit(blk, x, qb, dp, pk, so)
            out += ops[:2] + pend[:2] + ops[2:4] + pend[2:] + ops[4:]
            pend = tail
    return out + pend

def epi_soff(blk, x):
    return [salu("s_add_u32", sT[2 * x + qb], sQB, blk * HEAD + x * TILE + qb * 6144) for qb in range(2)]

DMA_GAPS = [6, 11, 16, 21, 26, 31]
BAR_GAP = 4

def mfmas(t):
    m = []
    m += [qk(t, 0, n) for n in range(24)] if t < 32 else [None] * 24
    m += [pv(t - 1, 1, n) for n in range(24)] if t >= 1 else [None] * 24
    m += [qk(t, 1, n) for n in range(24)] if t < 32 else [None] * 24
    m += [pv(t, 0, n) for n in range(24)] if t < 32 else [None] * 24
    return m

def fixed(t, bar_gap=BAR_GAP, dma_gaps=DMA_GAPS):
    sc = {}; mem = {}
    need = set()
    if t < 32: need.add(Vtag(t))
    if t + 1 < 32: need.add(Ktag(t + 1))
    if t < 32:
        sc[bar_gap - 1] = wait(vm=need, lgkm=0)
        sc[bar_gap] = barrier()
    if t + NV - 1 < 32:
        sc[dma_gaps[0] - 1] = m0_v(t + NV - 1)
        for j in range(3): mem[dma_gaps[j]] = dma_v(t + NV - 1, j)
    if t + NK < 32:
        sc[dma_gaps[3] - 2] = adv()
        sc[dma_gaps[3] - 1] = m0_k(t + NK)
        for j in range(3): mem[dma_gaps[3 + j]] = dma_k(t + NK, j)
    if t < 32:
        for n in range(24): mem[36 + 3 * (n >> 1) + (n & 1)] = vread(t, n)
    if t + 1 < 32:
        for n in range(12): mem[72 + 2 * n] = kread(t + 1, n)
    return sc, mem

def btail(first):
    return [cv(1, 0, 0), cv(1, 0, 1), cv(1, 1, 0), cv(1, 1, 1)] + [a_(1, 2, r, first) for r in range(4)] + \
           [a_(1, 3, r) for r in range(4)] + [cv(1, 2, 0), cv(1, 2, 1), cv(1, 3, 0), cv(1, 3, 1)]

def steady_valu(t):
    v = {g: [] for g in range(96)}
    bt = btail(False)
    gs = [g for g in range(0, 9) if g not in DMA_GAPS]
    for i, g in enumerate(gs): v[g] = bt[2 * i:2 * i + 2]
    gs = [g for g in range(9, 36) if g not in DMA_GAPS] + [38, 41]
    i = 0
    for c in range(4):
        v[gs[i]] = [f_(0, c, 0), f_(0, c, 1)]; v[gs[i + 1]] = [f_(0, c, 2), f_(0, c, 3)]; i += 2
        for r in range(4): v[gs[i]] = [e_(0, c, r)]; i += 1
    sing = []
    for c in range(4): sing += [a_(0, c, r) for r in range(4)] + [cv(0, c, 0), cv(0, c, 1)]
    for g in range(36, 57):
        if g in (38, 41): continue
        n = 2 if (g - 36) % 3 == 2 else 1
        v[g] = sing[:n]; sing = sing[n:]
    assert not sing
    fs = [f_(1, c, r) for c in range(4) for r in range(4)] + [a_(1, 0, r) for r in range(4)] + [a_(1, 1, 0), a_(1, 1, 1)]
    sg = [57, 58, 60, 61, 63, 64, 66, 67, 69, 70] + list(range(72, 96, 2))
    for g, op in zip(sg, fs): v[g] = [op]
    eg = [59, 62, 65, 68, 71] + list(range(73, 95, 2))
    for g, op in zip(eg, [e_(1, c, r) for c in range(4) for r in range(4)]): v[g] = [op]
    v[95] = [a_(1, 1, 2), a_(1, 1, 3)]
    return v

def emit_gaps(m, sc, mem, v, extra=None):
    out = []
    for g in range(len(m)):
        if m[g] is not None: out.append(m[g])
        for d in (sc, mem):
            x = d.get(g)
            if x is None: continue
            out += x if isinstance(x, list) else [x]
        out += v.get(g, [])
        if extra and g in extra: out += extra[g]
    return out

def greedy(m, sc, mem, streams, drains):
    v = {}; pre = {}
    streams = [list(s) for s in streams]
    out = []
    for g in range(len(m)):
        for si, cnt in drains.get(g, []):
            s = streams[si]
            while s and len(s) > cnt: out.append(s.pop(0)[1])
        cap = 2
        if m[g] is not None: out.append(m[g])
        for d in (sc, mem):
            x = d.get(g)
            if x is None: continue
            x = x if isinstance(x, list) else [x]
            out += x
            if d is mem: cap -= sum(o.cost for o in x)
        prog = True
        while cap > 0 and prog:
            prog = False
            for s in streams:
                if s and s[0][0] <= g and s[0][1].cost <= cap:
                    op = s.pop(0)[1]; out.append(op); cap -= op.cost; prog = True; break
    for s in streams: assert not s, s
    return out

def at(g, ops): return [(g, o) for o in ops]

def soft_first(x, base):
    mx = maxops(x)
    s = at(base + 15, mx[0][:5]) + at(base + 16, mx[0][5:8]) + at(base + 17, mx[0][8:])
    s += at(base + 18, [f_(x, 0, r) for r in range(4)] + [e_(x, 0, r) for r in range(4)])
    s += at(base + 18, [f_(x, 1, r) for r in range(4)])
    s += at(base + 27, mx[1][:5]) + [(base + 27, e_(x, 1, 0))] + at(base + 27, mx[1][5:8]) + [(base + 27, e_(x, 1, 1))]
    s += at(base + 27, mx[1][8:]) + at(base + 27, [e_(x, 1, 2), e_(x, 1, 3)])
    for c in (2, 3): s += at(base + 27, [f_(x, c, r) for r in range(4)] + [e_(x, c, r) for r in range(4)])
    if x == 0:
        for c in range(4): s += at(base + 27, [a_(x, c, r, True) for r in range(4)] + [cv(x, c, 0), cv(x, c, 1)])
    else:
        s += at(base + 27, [a_(x, 0, r, True) for r in range(4)] + [a_(x, 1, r) for r in range(4)])
    return s

def qprime(t):
    sc = {}; ex = {}
    if 2 <= t <= 7:
        n0 = 2 * (t - 2); qb = n0 // 6
        sc[39] = salu("s_add_u32", sT[0], sQB, HEAD + qb * 6144)
        for i, g in enumerate((44, 62)):
            cc = (n0 + i) % 6
            ex[g] = [bload(rr("a", QA(1, 0, qb, cc), 4), f"v{QV}", SQ, sT[0], cc * 64, mods=QM)]
    if 8 <= t <= 11:
        gi = t - 8
        sc[39] = salu("s_add_u32", sT[0], sQB, HEAD + TILE + gi * 3072)
        sc[42] = salu("s_add_u32", "m0", sWS, QST + gi * 3072)
        for j, g in enumerate((44, 56, 68)):
            ex[g] = [dma(f"v{DV[j]}", SQ, sT[0], 1024 * j, lds=QBtag, mods=QM)]
    return sc, ex

def stamp(i):
    return [raw("s_memtime s[60:61]", "smem", wr=["s60", "s61"])]
def stamp_save(i):
    return [valu("v_writelane_b32", f"v{TS}", "s60", i)]

def step(t):
    m = mfmas(t)
    first = (t & 15) == 0
    if not first:
        sc, mem = fixed(t)
        v = steady_valu(t)
        if (t & 15) == 1:
            bt = btail(True)
            gs = [g for g in range(0, 9) if g not in DMA_GAPS]
            for i, g in enumerate(gs): v[g] = bt[2 * i:2 * i + 2]
        qs, ex = qprime(t)
        for g, o in qs.items(): assert g not in sc; sc[g] = o
        for g, o in ex.items():
            assert g not in mem; mem[g] = o
        ex = {}
        if DIAG: ex[BAR_GAP] = stamp_save(t) + stamp(t + 1)
        return [comment(f"---- step {t}")] + emit_gaps(m, sc, mem, v, ex)
    if t == 0:
        sc, mem = fixed(0, bar_gap=30, dma_gaps=[32, 33, 34, 38, 41, 44])
        if DIAG: sc[30] = [sc[30]] + stamp_save(0) + stamp(1)
        A = soft_first(0, 0); B = soft_first(1, 48)
        return [comment("---- step 0")] + greedy(m, sc, mem, [A, B], {72: [(0, 0)], 95: [(1, 0)]})
    if t == 16:
        sc, mem = fixed(16)
        if DIAG: sc[BAR_GAP] = [sc[BAR_GAP]] + stamp_save(16) + stamp(17)
        free = [g for g in range(0, 36) if g not in mem and g >= 7][:12]
        for n, g in enumerate(free):
            qb, cc = divmod(n, 6)
            mem[g] = ds_read("ds_read_b128", rr("a", QA(1, 1, qb, cc), 4), f"v{T[10+(cc&1)]}", qb * 6144 + (cc >> 1) * 128, lds=QBtag)
        bt = at(0, btail(False))
        EA = at(4, epi_soff(0, 0) + epi_head(0, 0)) + at(4, epi_body(0, 0, False, {(0, 0), (0, 1)}))
        EA2 = at(999, epi_body(0, 0, PK, {(q, d) for q in range(2) for d in range(6)} - {(0, 0), (0, 1)}))
        A = soft_first(0, 0)
        EB = at(10, epi_soff(0, 1) + epi_head(0, 1))
        EB2 = at(999, epi_body(0, 1, PK))
        B = soft_first(1, 48)
        return [comment("---- step 16")] + greedy(m, sc, mem, [bt, A, EA, EA2, EB, B, EB2],
                 {24: [(0, 0), (2, 0), (3, 0), (4, 0)], 72: [(1, 0), (6, 0)], 95: [(5, 0)]})
    if t == 32:
        m = mfmas(32)[24:48]
        out = [comment("---- tail")] + btail(False) + epi_soff(1, 0) + epi_soff(1, 1)
        first_units = {(0, 0), (0, 1)}
        EA = at(0, epi_head(1, 0) + epi_body(1, 0, False, first_units))
        EB = at(0, epi_head(1, 1))
        out += greedy(m + [None], {}, {}, [EA, EB], {24: [(0, 0), (1, 0)]})
        out += epi_body(1, 0, PK, {(q, d) for q in range(2) for d in range(6)} - first_units)
        out += epi_body(1, 1, PK)
        return out

def prologue():
    o = []
    o.append(raw("s_load_dwordx8 s[36:43], s[0:1], 0", "smem", wr=R("s", 36, 8)))
    if DIAG:
        o.append(raw("s_load_dwordx2 s[62:63], s[0:1], 40", "smem", wr=["s62", "s63"]))
        o.append(raw("s_memtime s[64:65]", "smem", wr=["s64", "s65"]))
        o.append(raw("s_memrealtime s[66:67]", "smem", wr=["s66", "s67"]))
    if SPIN and not DIAG: o.append(raw("s_memrealtime s[66:67]", "smem", wr=["s66", "s67"]))
    o.append(salu("s_cmp_ge_u32", None, "s2", 256))
    o.append(raw("s_cbranch_scc1 L_end", "branch"))
    lane, i_, g_, t0, t1, t2 = "v1", "v2", "v3", "v4", "v5", "v6"
    o.append(valu("v_lshrrev_b32", t0, 6, "v0"))
    o.append(valu("v_and_b32", lane, 63, "v0"))
    o.append(valu("v_readfirstlane_b32", sW, t0))
    o.append(valu("v_and_b32", i_, 15, lane))
    o.append(valu("v_lshrrev_b32", g_, 4, lane))
    if OPT.get("map") == "adj":
        o.append(salu("s_lshr_b32", "s31", "s2", 1))
        o.append(salu("s_and_b32", "s32", "s2", 1))
    else:
        o.append(salu("s_and_b32", "s31", "s2", 7))
        o.append(salu("s_lshr_b32", "s32", "s2", 3))
        o.append(salu("s_lshl_b32", "s31", "s31", 4))
        o.append(salu("s_lshr_b32", "s33", "s32", 1))
        o.append(salu("s_add_u32", "s31", "s31", "s33"))
        o.append(salu("s_and_b32", "s32", "s32", 1))
    o.append(salu("s_mul_i32", "s31", "s31", 2 * HEAD))
    o.append(salu("s_mul_i32", sWL, sW, 3072))
    o.append(salu("s_mul_i32", sWS, sW, TILE))
    o.append(salu("s_add_u32", sKV, "s31", sWL))
    o.append(salu("s_mul_i32", "s32", "s32", 256 * 384))
    o.append(salu("s_mul_i32", "s33", sW, 64 * 384))
    o.append(salu("s_add_u32", sQB, "s31", "s32"))
    o.append(salu("s_add_u32", sQB, sQB, "s33"))
    o.append(salu("s_mov_b32", sC, hex(CBITS)))
    o.append(salu("s_mov_b32", sTHR, hex(THR)))
    o.append(salu("s_mov_b32", "s34", "0x31756420"))
    o.append(salu("s_and_b32", "s35", sW, 1))
    o.append(salu("s_lshl_b32", "s35", "s35", 4))
    o.append(valu("v_lshlrev_b32", t2, 4, lane))
    for j in range(3):
        o.append(valu("v_add_u32", t0, 64 * j, lane))
        o.append(valu("v_mul_u32_u24", t0, 171, t0))
        o.append(valu("v_lshrrev_b32", t0, 13, t0))
        o.append(valu("v_lshl_add_u32", t0, t0, 2, "s35"))
        o.append(valu("v_bfe_u32", t0, "s34", t0, 3))
        o.append(valu("v_lshlrev_b32", t0, 4, t0))
        o.append(valu("v_xor_b32", f"v{DV[j]}", t0, t2))
    o.append(valu("v_mul_u32_u24", t1, 384, i_))
    o.append(valu("v_lshl_add_u32", f"v{QV}", g_, 4, t1))
    o.append(raw("s_waitcnt lgkmcnt(0)", "salu"))
    for base, src in ((4, 36), (8, 38), (12, 40), (16, 42)):
        o.append(salu("s_mov_b32", f"s{base}", f"s{src}"))
        o.append(salu("s_and_b32", f"s{base+1}", f"s{src+1}", "0xffff"))
        o.append(salu("s_mov_b32", f"s{base+2}", "0x3000000"))
        o.append(salu("s_mov_b32", f"s{base+3}", "0x20000"))
    def kd(t): return [m0_k(t), nop(1)] + [dma_k(t, j) for j in range(3)]
    def vd(t): return [m0_v(t), nop(1)] + [dma_v(t, j) for j in range(3)]
    def qd(x):
        r = []
        for qb in range(2):
            r.append(salu("s_add_u32", sT[qb], sQB, x * TILE + qb * 6144))
            r += [bload(rr("a", QA(0, x, qb, cc), 4), f"v{QV}", SQ, sT[qb], cc * 64, mods=QM) for cc in range(6)]
        return r
    o += kd(0) + qd(0) + qd(1)
    for t in range(NV - 1):
        o += vd(t) + [adv()] + kd(t + 1)
    o.append(valu("v_and_b32", t0, 1, g_))
    o.append(valu("v_lshl_add_u32", t0, t0, 5, t1))
    o.append(valu("v_lshrrev_b32", t2, 1, g_))
    o.append(valu("v_lshl_add_u32", f"v{SV}", t2, 4, t0))
    o.append(valu("v_lshrrev_b32", t0, 1, i_))
    o.append(valu("v_lshlrev_b32", t0, 2, t0))
    o.append(valu("v_bfe_u32", t0, "s34", t0, 3))
    o.append(valu("v_xor_b32", t0, t0, g_))
    o.append(valu("v_lshl_add_u32", f"v{KA[0]}", t0, 4, t1))
    o.append(valu("v_xor_b32", f"v{KA[1]}", 64, f"v{KA[0]}"))
    o.append(valu("v_bfe_u32", t0, i_, 1, 2))
    o.append(valu("v_lshl_add_u32", t0, t0, 2, "s35"))
    o.append(valu("v_bfe_u32", t0, "s34", t0, 3))
    o.append(valu("v_xor_b32", t0, t0, g_))
    o.append(valu("v_lshl_add_u32", t0, t0, 4, t1))
    o.append(salu("s_add_u32", "s33", sWS, QST))
    o.append(valu("v_add_u32", f"v{T[10]}", "s33", t0))
    o.append(valu("v_xor_b32", f"v{T[11]}", 64, f"v{T[10]}"))
    o.append(valu("v_lshrrev_b32", t0, 2, i_))
    o.append(valu("v_lshl_add_u32", t0, g_, 2, t0))
    o.append(valu("v_lshrrev_b32", t2, 1, t0))
    o.append(valu("v_lshlrev_b32", t2, 2, t2))
    o.append(valu("v_bfe_u32", t2, "s34", t2, 3))
    o.append(valu("v_mul_u32_u24", t0, 384, t0))
    o.append(valu("v_bfe_u32", t1, i_, 1, 1))
    o.append(valu("v_xor_b32", t2, t2, t1))
    o.append(valu("v_lshl_add_u32", t0, t2, 4, t0))
    o.append(valu("v_and_b32", t1, 1, i_))
    o.append(valu("v_lshl_add_u32", t0, t1, 3, t0))
    o.append(valu("v_add_u32", f"v{VA[0]}", VRING, t0))
    for k in range(1, 4): o.append(valu("v_xor_b32", f"v{VA[k]}", 32 * k, f"v{VA[0]}"))
    if DIAG: o.append(valu("v_mov_b32", f"v{TS}", 0))
    o.append(wait(vm={Ktag(0)}))
    o.append(barrier())
    o += [kread(0, n) for n in range(12)]
    if DIAG: o += stamp(0)
    return o

def slow_path():
    o = []
    segs = []
    lane, i_, g_ = f"v{T[8]}", f"v{T[9]}", f"v{T[10]}"
    lin, tra = f"v{T[11]}", f"v{VA[0]}"
    o.append(label("L_slow"))
    o.append(raw("s_waitcnt vmcnt(0) lgkmcnt(0)", "salu"))
    o.append(valu("v_mbcnt_lo_u32_b32", lane, -1, 0))
    o.append(valu("v_mbcnt_hi_u32_b32", lane, -1, lane))
    o.append(valu("v_and_b32", i_, 15, lane))
    o.append(valu("v_lshrrev_b32", g_, 4, lane))
    o.append(valu("v_lshlrev_b32", lin, 4, lane))
    o.append(valu("v_lshrrev_b32", tra, 2, i_))
    o.append(valu("v_lshl_add_u32", tra, g_, 2, tra))
    o.append(valu("v_mul_u32_u24", tra, 384, tra))
    o.append(valu("v_and_b32", i_, 3, i_))
    o.append(valu("v_lshl_add_u32", tra, i_, 3, tra))
    o.append(salu("s_add_u32", "s69", sWS, QST))
    o.append(valu("v_add_u32", tra, "s69", tra))
    o.append(salu("s_mov_b32", "s68", 0))
    o.append(label("L_slow_combo"))
    o.append(salu("s_bitcmp1_b32", None, "s70", "s68"))
    o.append(raw("s_cbranch_scc0 L_slow_next", "branch"))
    o.append(salu("s_lshr_b32", "s71", "s68", 1))
    o.append(salu("s_and_b32", "s72", "s68", 1))
    o.append(salu("s_mul_i32", "s71", "s71", HEAD))
    o.append(salu("s_mul_i32", "s72", "s72", TILE))
    o.append(salu("s_add_u32", sT[0], sQB, "s71"))
    o.append(salu("s_add_u32", sT[0], sT[0], "s72"))
    o.append(salu("s_add_u32", sT[1], sT[0], 6144))
    o.append(salu("s_add_u32", "s73", "s31", "s71"))
    for qb in range(2):
        o += [bload(rr("a", QA(0, 0, qb, cc), 4), f"v{QV}", SQ, sT[qb], cc * 64) for cc in range(6)]
        o.append(valu("v_mov_b32", f"v{NM(0,qb)}", "0xff800000"))
        o.append(valu("v_mov_b32", f"v{L(0,qb)}", 0))
    for r in range(96): o.append(valu("v_mov_b32", f"v{r}", 0))
    o.append(raw("s_waitcnt vmcnt(0)", "salu"))
    o.append(salu("s_mov_b32", "s74", 0))
    o.append(label("L_slow_pass"))
    o.append(salu("s_mov_b32", "s75", "s73"))
    o.append(salu("s_add_u32", "s76", "s73", HEAD))
    o.append(label("L_slow_tile"))
    o.append(salu("s_add_u32", "s77", "s75", 6144))
    for kb in range(2):
        o += [bload(rr("a", KF(kb, cc), 4), f"v{QV}", SK, ("s75", "s77")[kb], cc * 64) for cc in range(6)]
    o.append(salu("s_mov_b32", "m0", "s69"))
    o.append(salu("s_mov_b32", "s77", "s75"))
    for k in range(3):
        o += [dma(lin, SVV, "s77", 1024 * j) for j in range(4)]
        if k < 2:
            o.append(salu("s_add_u32", "m0", "m0", 4096))
            o.append(salu("s_add_u32", "s77", "s77", 4096))
    o.append(raw("s_waitcnt vmcnt(0)", "salu"))
    o += [qk(0, 0, n) for n in range(24)]
    o.append(nop(8))
    o.append(salu("s_cmp_eq_u32", None, "s74", 0))
    o.append(raw("s_cbranch_scc0 L_slow_p2", "branch"))
    for qb in range(2):
        for r in range(0, 8, 2):
            o.append(valu("v_max3_f32", f"v{NM(0,qb)}", f"v{NM(0,qb)}", f"v{P(0,qb)+r}", f"v{P(0,qb)+r+1}"))
    o.append(raw("s_branch L_slow_tile_end", "branch"))
    o.append(label("L_slow_p2"))
    for n in range(24):
        db, h = divmod(n, 2)
        o.append(ds_read("ds_read_b64_tr_b16", rr("a", VF(db) + 2 * h, 2), tra, h * 6144 + db * 32))
        if n == 11: o.append(raw("s_waitcnt lgkmcnt(0)", "salu"))
    for c in range(4): o += [f_(0, c, r) for r in range(4)]
    for c in range(4): o += [e_(0, c, r) for r in range(4)]
    o.append(nop(1))
    for c in range(4): o += [a_(0, c, r) for r in range(4)]
    for c in range(4): o += [cv(0, c, 0), cv(0, c, 1)]
    o.append(raw("s_waitcnt lgkmcnt(0)", "salu"))
    o.append(nop(2))
    o += [pv(1, 0, n) for n in range(24)]
    o.append(label("L_slow_tile_end"))
    o.append(nop(8))
    o.append(salu("s_add_u32", "s75", "s75", TILE))
    o.append(salu("s_cmp_lt_u32", None, "s75", "s76"))
    o.append(raw("s_cbranch_scc1 L_slow_tile", "branch"))
    o.append(salu("s_cmp_eq_u32", None, "s74", 0))
    o.append(raw("s_cbranch_scc0 L_slow_fin", "branch"))
    mx = maxops(0)
    for qb in range(2): o += mx[qb][4:]
    o.append(salu("s_mov_b32", "s74", 1))
    o.append(raw("s_branch L_slow_pass", "branch"))
    o.append(label("L_slow_fin"))
    o += epi_head(0, 0) + epi_body(0, 0, False)
    o.append(raw("s_waitcnt vmcnt(0)", "salu"))
    o.append(label("L_slow_next"))
    o.append(salu("s_add_u32", "s68", "s68", 1))
    o.append(salu("s_cmp_lt_u32", None, "s68", 4))
    o.append(raw("s_cbranch_scc1 L_slow_combo", "branch"))
    o.append(raw("s_endpgm", "branch"))
    return o

def finish():
    o = []
    if DIAG:
        o.append(raw("s_waitcnt lgkmcnt(0)", "salu"))
        o += stamp_save(32)
        o.append(raw("s_memtime s[60:61]", "smem"))
        o.append(raw("s_waitcnt lgkmcnt(0)", "salu"))
        o += stamp_save(33)
        o.append(raw("s_waitcnt vmcnt(0)", "salu"))
        o.append(raw("s_memtime s[60:61]", "smem"))
        o.append(raw("s_memrealtime s[78:79]", "smem"))
        o.append(raw("s_waitcnt lgkmcnt(0)", "salu"))
        o += stamp_save(34)
        o.append(valu("v_writelane_b32", f"v{TS}", "s64", 40))
        o.append(valu("v_writelane_b32", f"v{TS}", "s66", 41))
        o.append(valu("v_writelane_b32", f"v{TS}", "s78", 42))
        o.append(salu("s_mov_b32", "s80", "s62"))
        o.append(salu("s_and_b32", "s81", "s63", "0xffff"))
        o.append(salu("s_mov_b32", "s82", "0x10000000"))
        o.append(salu("s_mov_b32", "s83", "0x20000"))
        o.append(salu("s_lshl_b32", "s84", "s2", 2))
        o.append(salu("s_add_u32", "s84", "s84", sW))
        o.append(salu("s_lshl_b32", "s84", "s84", 8))
        o.append(valu("v_mbcnt_lo_u32_b32", f"v{T[8]}", -1, 0))
        o.append(valu("v_mbcnt_hi_u32_b32", f"v{T[8]}", -1, f"v{T[8]}"))
        o.append(valu("v_lshlrev_b32", f"v{T[8]}", 2, f"v{T[8]}"))
        o.append(bstore(f"v{TS}", f"v{T[8]}", "s[80:83]", "s84", 0, op="buffer_store_dword"))
    if DBG:
        o.append(raw("s_load_dwordx2 s[62:63], s[0:1], 32", "smem"))
        o.append(raw("s_waitcnt lgkmcnt(0)", "salu"))
        o.append(salu("s_mov_b32", "s80", "s62"))
        o.append(salu("s_and_b32", "s81", "s63", "0xffff"))
        o.append(salu("s_mov_b32", "s82", "0x100"))
        o.append(salu("s_mov_b32", "s83", "0x20000"))
        tv = f"v{T[7]}"
        o.append(valu("v_mov_b32", tv, 0))
        o.append(salu("s_not_b32", "s85", "s66"))
        o.append(valu("v_writelane_b32", tv, "s85", 0))
        o.append(valu("v_writelane_b32", tv, "s78", 1))
        o.append(valu("v_writelane_b32", tv, "s66", 2))
        for n, i in enumerate((0, 2, 9, 17, 18, 25, 32, 33, 34)):
            o.append(valu("v_readlane_b32", "s85", f"v{TS}", i))
            o.append(nop(2))
            o.append(salu("s_sub_u32", "s85", "s85", "s64"))
            o.append(valu("v_writelane_b32", tv, "s85", 3 + n))
        o.append(salu("s_sub_u32", "s85", "s78", "s66"))
        o.append(valu("v_writelane_b32", tv, "s85", 12))
        o.append(raw("s_getreg_b32 s85, hwreg(HW_REG_XCC_ID)", "salu"))
        o.append(salu("s_and_b32", "s85", "s85", 7))
        o.append(salu("s_and_b32", "s86", "s2", 7))
        o.append(salu("s_xor_b32", "s85", "s85", "s86"))
        o.append(valu("v_writelane_b32", tv, "s85", 13))
        o.append(salu("s_mov_b32", "exec_lo", "0xffff"))
        o.append(salu("s_mov_b32", "exec_hi", 0))
        o.append(nop(2))
        o.append(raw(f"buffer_atomic_umax {tv}, v{T[8]}, s[80:83], 0 offen", "vst"))
        o.append(raw("s_waitcnt vmcnt(0)", "salu"))
        o.append(salu("s_mov_b64", "exec", -1))
    if SPIN:
        o.append(label("L_spin"))
        o.append(raw("s_sleep 2", "salu"))
        o.append(raw("s_memrealtime s[78:79]", "smem"))
        o.append(raw("s_waitcnt lgkmcnt(0)", "salu"))
        o.append(salu("s_sub_u32", "s78", "s78", "s66"))
        o.append(salu("s_cmp_lt_u32", None, "s78", SPIN))
        o.append(raw("s_cbranch_scc1 L_spin", "branch"))
    o.append(salu("s_mov_b32", "s70", 15 if FORCE_SLOW else 0))
    for combo in range(4):
        f0 = FLAG(combo >> 1, combo & 1, 0)
        o.append(salu("s_or_b64", "s[72:73]", f"s[{f0}:{f0+1}]", f"s[{f0+2}:{f0+3}]"))
        o.append(salu("s_cselect_b32", "s71", 1 << combo, 0))
        o.append(salu("s_or_b32", "s70", "s70", "s71"))
    o.append(raw("s_cbranch_scc1 L_slow", "branch"))
    o.append(label("L_end"))
    o.append(raw("s_endpgm", "branch"))
    return o

def build():
    tr = prologue()
    for t in range(33): tr += step(t)
    tr += finish()
    tr = insert_waits(tr)
    tr, added = fix_hazards(tr)
    errs, issued = verify(tr, private=lambda tag: tag == QBtag)
    for e in errs[:30]: print("ERR", e)
    assert not errs
    assert all(v == (12 if k == QBtag else 3) for k, v in issued.items()) and len(issued) == 65, issued
    cur = "pro"; seg = {}
    for ins in tr:
        if ins.t.startswith("; ----"): cur = ins.t[7:]
        seg.setdefault(cur, []).append(ins)
    tot = 0
    for k, s in seg.items():
        c = est_cycles(s); tot += c
        if k in ("pro", "step 0", "step 1", "step 2", "step 8", "step 15", "step 16", "step 17", "step 18", "step 31", "tail"):
            print(f"{k:8s} instrs {len(s):4d} est cycles {c:5d} nops {sum(1 for i in s if i.k=='nop')} waits {sum(1 for i in s if i.k=='wait')}")
    print("total est cycles", tot)
    sp, _ = fix_hazards(slow_path())
    return tr + sp

HDR = open("standalone__mha_softmax__near_ridge.s.ref").read().split("; @launch")[0]
def main():
    tr = build()
    o = [HDR + f"; @launch grid=(256,1,1) block=(256,1,1) lds={LDS_BYTES}",
         '.amdgcn_target "amdgcn-amd-amdhsa--gfx950"', ".text", f".globl {KN}", ".p2align 8",
         f".type {KN},@function", f"{KN}:"]
    for ins in tr: o.append(ins.t if ins.k == "label" else "  " + ins.t)
    o.append(f'''.section .rodata,"a"
.p2align 6
.amdhsa_kernel {KN}
  .amdhsa_next_free_vgpr 512
  .amdhsa_next_free_sgpr 102
  .amdhsa_accum_offset 256
  .amdhsa_group_segment_fixed_size 0
  .amdhsa_kernarg_size 48
  .amdhsa_user_sgpr_count 2
  .amdhsa_user_sgpr_kernarg_segment_ptr 1
  .amdhsa_system_sgpr_workgroup_id_x 1
.end_amdhsa_kernel''')
    open(sys.argv[1], "w").write("\n".join(o) + "\n")
main()
```

```python
import sys, struct, math
sys.path.insert(0, "gen")
from fw import *

OPT = dict(x.split("=") for x in sys.argv[2:])
DIAG = int(OPT.get("diag", 0))
DBG = int(OPT.get("dbg", 0))
SPIN = int(OPT.get("spin", 0))
FORCE_SLOW = int(OPT.get("force_slow", 0))
PK = int(OPT.get("pk", 1))
def _m(k): return "".join(" " + x for x in OPT.get(k, "").split("+") if x)
LM = _m("lm"); QM = _m("qm"); SM = _m("sm")
KN = "standalone__mha_softmax__near_ridge_kernel"

TILE = 12288; HEAD = 196608
NK = 4; NV = 4
KRING = 0; VRING = 5 * TILE; QST = 9 * TILE; RS = int(OPT.get("rs", 400)); STG = 32 * RS
LDS_BYTES = QST + 4 * STG
def vslot(t): return (NV - 1 - t % NV) * TILE
SNAKE = int(OPT.get("snake", 1))
CAP16 = int(OPT.get("cap16", 4))
TOUCH = int(OPT.get("touch", 1))
SM2 = _m("sm2") if "sm2" in OPT else SM

def O(x, qb, db): return x * 96 + qb * 48 + db * 4
def S(x, c): return 192 + x * 16 + c * 4
def P(x, qb): return 192 + x * 16 + qb * 8
def L(x, qb): return 224 + 2 * x + qb
def NM(x, qb): return 228 + 2 * x + qb
KA = [232, 233]; VA = [234, 235, 236, 237]; DV = [238, 239, 240]
QV = 241; SV = 242
T = list(range(243, 255))
TS = 255
QR = [T[4], T[5]]; EW = T[6]; ER = [T[7], T[8], T[9]]; TS2 = T[11]
sE = [f"s{88+i}" for i in range(8)]
def QA(blk, x, qb, cc):
    base = 192 if (blk == 1 and x == 0) else x * 48
    return base + qb * 24 + cc * 4
def KF(kb, cc): return 96 + kb * 24 + cc * 4
def VF(db): return 144 + db * 4
SQ, SK, SVV, SO = "s[4:7]", "s[8:11]", "s[12:15]", "s[16:19]"
sKV, sWL, sC, sQB, sW, sTHR, sWS = "s20", "s21", "s22", "s23", "s29", "s28", "s30"
sT = ["s24", "s25", "s26", "s27"]
def FLAG(blk, x, qb): return 44 + 2 * (4 * blk + 2 * x + qb)
CBITS = struct.unpack("<I", struct.pack("<f", 192 ** -0.5 * math.log2(math.e)))[0]
THR = 0x4b800000

def Ktag(t): return (f"K{t}", ("K", t % NK))
def Vtag(t): return (f"V{t}", ("V", t % NV))
QBtag = ("QB1", ("QB", 0)); QB0tag = ("QB0", ("QB", 0)); QAtag = ("QA", ("QA", 0))

def qk(t, x, n):
    c, cc = divmod(n, 6); qb, kb = divmod(c, 2)
    d = rr("v", S(x, c), 4)
    return mfma(d, rr("a", KF(kb, cc), 4), rr("a", QA(t >> 4, x, qb, cc), 4), d if cc else 0)
def pv(t, x, n):
    if SNAKE: db, r = divmod(n, 2); qb = r ^ (db & 1)
    else: qb, db = divmod(n, 12)
    d = rr("v", O(x, qb, db), 4)
    return mfma(d, rr("a", VF(db), 4), rr("v", P(x, qb), 4), d if (t & 15) else 0)
def f_(x, c, r): return valu("v_fma_f32", f"v{S(x,c)+r}", f"v{S(x,c)+r}", sC, f"v{NM(x,c>>1)}")
def e_(x, c, r): return valu("v_exp_f32", f"v{S(x,c)+r}", f"v{S(x,c)+r}")
def a_(x, c, r, first=False):
    l = f"v{L(x,c>>1)}"
    if first and (c & 1) == 0 and r == 0: return valu("v_mov_b32", l, f"v{S(x,c)+r}")
    return valu("v_add_f32", l, l, f"v{S(x,c)+r}")
def cv(x, c, h):
    qb, kb = divmod(c, 2)
    return valu("v_cvt_pk_bf16_f32", f"v{P(x,qb)+2*kb+h}", f"v{S(x,c)+2*h}", f"v{S(x,c)+2*h+1}")
def kread(t, n):
    kb, cc = divmod(n, 6)
    return ds_read("ds_read_b128", rr("a", KF(kb, cc), 4), f"v{KA[cc&1]}", KRING + (t % NK) * TILE + kb * 6144 + (cc >> 1) * 128, lds=Ktag(t))
def vread(t, n):
    db, h = divmod(n, 2)
    return ds_read("ds_read_b64_tr_b16", rr("a", VF(db) + 2 * h, 2), f"v{VA[db&3]}", vslot(t) + h * 6144 + (db >> 2) * 128, lds=Vtag(t))
def m0_k(t): return salu("s_add_u32", "m0", sWL, KRING + (t % NK) * TILE)
def m0_v(t): return salu("s_add_u32", "m0", sWL, VRING + vslot(t))
def dma_k(t, j): return dma(f"v{DV[j]}", SK, sKV, 1024 * j, lds=Ktag(t), mods=LM)
def dma_v(t, j): return dma(f"v{DV[j]}", SVV, sKV, 1024 * j, lds=Vtag(t), mods=LM)
def adv(): return salu("s_add_u32", sKV, sKV, TILE)

def maxops(x):
    res = []
    for qb in range(2):
        s = P(x, qb); m = f"v{NM(x,qb)}"; t = f"v{L(x,qb)}"
        res.append([
            valu("v_max3_f32", m, f"v{s}", f"v{s+1}", f"v{s+2}"),
            valu("v_max3_f32", t, f"v{s+3}", f"v{s+4}", f"v{s+5}"),
            valu("v_max3_f32", m, m, f"v{s+6}", f"v{s+7}"),
            valu("v_max_f32", m, m, t),
            valu("v_mov_b32", t, m),
            swap("v_permlane16_swap_b32", m, t),
            valu("v_max_f32", m, m, t),
            valu("v_mov_b32", t, m),
            swap("v_permlane32_swap_b32", m, t),
            valu("v_max_f32", m, m, t),
            valu("v_mul_f32_e64", m, m, "-" + sC),
        ])
    return res

def interleave(*ls):
    out = []; n = max(len(l) for l in ls)
    for i in range(n):
        for l in ls:
            if i < len(l): out.append(l[i])
    return out

def epi_head(blk, x):
    res = []
    for qb in range(2):
        t = f"v{L(x,qb)}"; r = f"v{T[2*x+qb]}"
        fl = FLAG(blk, x, qb)
        res.append([
            valu("v_mov_b32", r, t),
            swap("v_permlane16_swap_b32", r, t),
            valu("v_add_f32", r, r, t),
            valu("v_mov_b32", t, r),
            swap("v_permlane32_swap_b32", r, t),
            valu("v_add_f32", r, r, t),
            valu("v_cmp_ngt_f32_e64", f"s[{fl}:{fl+1}]", sTHR, r),
            valu("v_rcp_f32", r, r),
        ])
    return interleave(*res)

def epi_unit(x, qb, db, pk):
    b = O(x, qb, db); r = T[2 * x + qb]
    ops = []
    if pk:
        re_ = r & ~1; sel = r & 1
        for i in range(2):
            ops.append(valu("v_pk_mul_f32", rr("v", b + 2 * i, 2), rr("v", b + 2 * i, 2), rr("v", re_, 2),
                            mods=f"op_sel:[0,{sel}] op_sel_hi:[1,{sel}]"))
    else:
        for i in range(4): ops.append(valu("v_mul_f32", f"v{b+i}", f"v{b+i}", f"v{r}"))
    cvs = [valu("v_cvt_pk_bf16_f32", f"v{b+i}", f"v{b+2*i}", f"v{b+2*i+1}") for i in range(2)]
    return ops, cvs, ds_write("ds_write_b64", f"v{EW}", rr("v", b, 2), qb * 16 * RS + db * 32)

EG = int(OPT.get("eg", 2))
def epi_qb(x, qb, pk, dbs=range(12)):
    out = []; pend = []
    dbs = list(dbs)
    for i in range(0, len(dbs), EG):
        us = [epi_unit(x, qb, db, pk) for db in dbs[i:i + EG]]
        for u in us: out += u[0]
        out += pend
        for u in us: out += u[1]
        pend = [u[2] for u in us]
    return out + pend

def epi_valu(x, pk):
    out = []
    for qb in range(2):
        for i in range(0, 12, 2):
            us = [epi_unit(x, qb, db, pk) for db in (i, i + 1)]
            out += us[0][0] + us[1][0] + us[0][1] + us[1][1]
    return out
def epi_writes(x): return [epi_unit(x, qb, db, True)[2] for qb in range(2) for db in range(12)]
def aread(n):
    return ds_read("ds_read_b128", rr("a", 4 * n, 4), f"v{ER[n%3]}", (n // 3) * 8 * RS)
def astore(x, n): return bstore(rr("a", 4 * n, 4), f"v{SV}", SO, sE[4 * x + n // 3], 1024 * (n % 3), mods=SM)

def epi_reads(x, qb):
    if RS == 392:
        return [ds_read("ds_read_b64", rr("v", O(x, qb, n) + 2 * h, 2), f"v{ER[n%3]}", (2 * qb + n // 3) * 8 * RS + 8 * h) for n in range(6) for h in range(2)]
    return [ds_read("ds_read_b128", rr("v", O(x, qb, n), 4), f"v{ER[n%3]}", (2 * qb + n // 3) * 8 * RS) for n in range(6)]
def epi_stores(x, qb, sm):
    return [bstore(rr("v", O(x, qb, n), 4), f"v{SV}", SO, sE[4 * x + 2 * qb + n // 3], 1024 * (n % 3), mods=sm) for n in range(6)]

def spread(base, extra, start=0):
    out = list(base[:start]); rest = base[start:]
    n = len(extra); k = 0
    for i, o in enumerate(rest):
        out.append(o)
        while k < n and (i + 1) * n >= (k + 1) * len(rest): out.append(extra[k]); k += 1
    return out + extra[k:]

def epi_soff(blk, x):
    return [salu("s_add_u32", sE[4 * x + a], sQB, blk * HEAD + x * TILE + a * 3072) for a in range(4)]

DMA_GAPS = [6, 11, 16, 21, 26, 31]
BAR_GAP = 4

def mfmas(t):
    m = []
    m += [qk(t, 0, n) for n in range(24)] if t < 32 else [None] * 24
    m += [pv(t - 1, 1, n) for n in range(24)] if t >= 1 else [None] * 24
    m += [qk(t, 1, n) for n in range(24)] if t < 32 else [None] * 24
    m += [pv(t, 0, n) for n in range(24)] if t < 32 else [None] * 24
    return m

def fixed(t, bar_gap=BAR_GAP, dma_gaps=DMA_GAPS):
    sc = {}; mem = {}
    need = set()
    if t < 32: need.add(Vtag(t))
    if t + 1 < 32: need.add(Ktag(t + 1))
    if t < 32:
        sc[bar_gap - 1] = wait(vm=need, lgkm=0)
        sc[bar_gap] = barrier()
    if t + NV - 1 < 32:
        sc[dma_gaps[0] - 1] = m0_v(t + NV - 1)
        for j in range(3): mem[dma_gaps[j]] = dma_v(t + NV - 1, j)
    if t + NK < 32:
        sc[dma_gaps[3] - 2] = adv()
        sc[dma_gaps[3] - 1] = m0_k(t + NK)
        for j in range(3): mem[dma_gaps[3 + j]] = dma_k(t + NK, j)
    if t < 32:
        for n in range(24): mem[36 + 3 * (n >> 1) + (n & 1)] = vread(t, n)
    if t + 1 < 32:
        for n in range(12): mem[72 + 2 * n] = kread(t + 1, n)
    return sc, mem

def btail(first):
    return [cv(1, 0, 0), cv(1, 0, 1), cv(1, 1, 0), cv(1, 1, 1)] + [a_(1, 2, r, first) for r in range(4)] + \
           [a_(1, 3, r) for r in range(4)] + [cv(1, 2, 0), cv(1, 2, 1), cv(1, 3, 0), cv(1, 3, 1)]

def steady_valu(t):
    v = {g: [] for g in range(96)}
    bt = btail(False)
    gs = [g for g in range(0, 9) if g not in DMA_GAPS]
    for i, g in enumerate(gs): v[g] = bt[2 * i:2 * i + 2]
    gs = [g for g in range(9, 36) if g not in DMA_GAPS] + [38, 41]
    i = 0
    for c in range(4):
        v[gs[i]] = [f_(0, c, 0), f_(0, c, 1)]; v[gs[i + 1]] = [f_(0, c, 2), f_(0, c, 3)]; i += 2
        for r in range(4): v[gs[i]] = [e_(0, c, r)]; i += 1
    sing = []
    for c in range(4): sing += [a_(0, c, r) for r in range(4)] + [cv(0, c, 0), cv(0, c, 1)]
    for g in range(36, 57):
        if g in (38, 41): continue
        n = 2 if (g - 36) % 3 == 2 else 1
        v[g] = sing[:n]; sing = sing[n:]
    assert not sing
    fs = [f_(1, c, r) for c in range(4) for r in range(4)] + [a_(1, 0, r) for r in range(4)] + [a_(1, 1, 0), a_(1, 1, 1)]
    sg = [57, 58, 60, 61, 63, 64, 66, 67, 69, 70] + list(range(72, 96, 2))
    for g, op in zip(sg, fs): v[g] = [op]
    eg = [59, 62, 65, 68, 71] + list(range(73, 95, 2))
    for g, op in zip(eg, [e_(1, c, r) for c in range(4) for r in range(4)]): v[g] = [op]
    v[95] = [a_(1, 1, 2), a_(1, 1, 3)]
    return v

def emit_gaps(m, sc, mem, v, extra=None):
    out = []
    for g in range(len(m)):
        if m[g] is not None: out.append(m[g])
        for d in (sc, mem):
            x = d.get(g)
            if x is None: continue
            out += x if isinstance(x, list) else [x]
        out += v.get(g, [])
        if extra and g in extra: out += extra[g]
    return out

def greedy(m, sc, mem, streams, drains, capf=lambda g: 2, over=False):
    v = {}; pre = {}
    streams = [list(s) for s in streams]
    out = []
    for g in range(len(m)):
        for si, cnt in drains.get(g, []):
            s = streams[si]
            while s and len(s) > cnt: out.append(s.pop(0)[1])
        cap = capf(g)
        if m[g] is not None: out.append(m[g])
        for d in (sc, mem):
            x = d.get(g)
            if x is None: continue
            x = x if isinstance(x, list) else [x]
            out += x
            if d is mem: cap -= sum(o.cost for o in x)
        prog = True
        while cap > 0 and prog:
            prog = False
            for s in streams:
                if s and s[0][0] <= g and (over or s[0][1].cost <= cap):
                    op = s.pop(0)[1]; out.append(op); cap -= op.cost; prog = True; break
    for s in streams: assert not s, s
    return out

def at(g, ops): return [(g, o) for o in ops]

def soft_first(x, base):
    mx = maxops(x)
    s = at(base + 15, mx[0][:5]) + at(base + 16, mx[0][5:8]) + at(base + 17, mx[0][8:])
    s += at(base + 18, [f_(x, 0, r) for r in range(4)] + [e_(x, 0, r) for r in range(4)])
    s += at(base + 18, [f_(x, 1, r) for r in range(4)])
    s += at(base + 27, mx[1][:5]) + [(base + 27, e_(x, 1, 0))] + at(base + 27, mx[1][5:8]) + [(base + 27, e_(x, 1, 1))]
    s += at(base + 27, mx[1][8:]) + at(base + 27, [e_(x, 1, 2), e_(x, 1, 3)])
    for c in (2, 3): s += at(base + 27, [f_(x, c, r) for r in range(4)] + [e_(x, c, r) for r in range(4)])
    if x == 0:
        for c in range(4): s += at(base + 27, [a_(x, c, r, True) for r in range(4)] + [cv(x, c, 0), cv(x, c, 1)])
    else:
        s += at(base + 27, [a_(x, 0, r, True) for r in range(4)] + [a_(x, 1, r) for r in range(4)])
    return s

def qprime(t):
    sc = {}; ex = {}
    if 2 <= t <= 7:
        n0 = 2 * (t - 2); qb = n0 // 6
        sc[39] = salu("s_add_u32", sT[0], sQB, HEAD + qb * 6144)
        for i, g in enumerate((44, 62)):
            cc = (n0 + i) % 6
            ex[g] = [bload(rr("a", QA(1, 0, qb, cc), 4), f"v{QV}", SQ, sT[0], cc * 64, mods=QM)]
    if 8 <= t <= 11:
        gi = t - 8
        sc[39] = salu("s_add_u32", sT[0], sQB, HEAD + TILE + gi * 3072)
        sc[42] = salu("s_add_u32", "m0", sWS, gi * 3072)
        for j, g in enumerate((44, 56, 68)):
            ex[g] = [dma(f"v{DV[j]}", SQ, sT[0], 1024 * j, lds=QBtag, mods=QM)]
    if 17 <= t <= 28:
        x, k = divmod(t - 17, 6)
        ex[44] = [astore(x, 2 * k)]; ex[62] = [astore(x, 2 * k + 1)]
    if 22 <= t <= 27:
        k = t - 22
        ex[91] = [aread(2 * k)]; ex[93] = [aread(2 * k + 1)]
    return sc, ex

def stamp(i):
    return [raw("s_memtime s[60:61]", "smem", wr=["s60", "s61"]), raw("s_memrealtime s[96:97]", "smem", wr=["s96", "s97"])]
def stamp_save(i):
    return [valu("v_writelane_b32", f"v{TS}", "s60", i), valu("v_writelane_b32", f"v{TS2}", "s96", i)]

def pst(i): return [raw(f"s_memrealtime s[{68+2*i}:{69+2*i}]", "smem", wr=[f"s{68+2*i}", f"s{69+2*i}"])] if DIAG else []

def qread(blk, x, n, addr, tag):
    qb, cc = divmod(n, 6)
    return ds_read("ds_read_b128", rr("a", QA(blk, x, qb, cc), 4), f"v{addr[cc&1]}", qb * 6144 + (cc >> 1) * 128, lds=tag)

def step(t):
    m = mfmas(t)
    first = (t & 15) == 0
    if not first:
        sc, mem = fixed(t)
        v = steady_valu(t)
        if (t & 15) == 1:
            bt = btail(True)
            gs = [g for g in range(0, 9) if g not in DMA_GAPS]
            for i, g in enumerate(gs): v[g] = bt[2 * i:2 * i + 2]
        qs, ex = qprime(t)
        for g, o in qs.items(): assert g not in sc; sc[g] = o
        for g, o in ex.items():
            assert g not in mem; mem[g] = o
        ex = {}
        if DIAG: ex[BAR_GAP] = stamp_save(t) + stamp(t + 1)
        return [comment(f"---- step {t}")] + emit_gaps(m, sc, mem, v, ex)
    if t == 0:
        sc, mem = fixed(0)
        sc = {}; mem = {g: o for g, o in mem.items() if o.k == "ds" and g >= 72}
        kd = lambda t: [m0_k(t), nop(1)] + [dma_k(t, j) for j in range(3)]
        vd = lambda t: [m0_v(t), nop(1)] + [dma_v(t, j) for j in range(3)]
        mem[6] = [m0_v(0)]
        for j in range(3): mem[7 + j] = dma_v(0, j)
        mem[10] = [adv(), m0_k(1)]
        for j in range(3): mem[11 + j] = dma_k(1, j)
        sc[14] = wait(lgkm=0); sc[15] = barrier()
        if DIAG: sc[15] = [sc[15]] + stamp_save(0) + stamp(1)
        mem[47] = vd(1) + [adv()] + kd(2) + vd(2) + [adv()] + kd(3) + \
                  [wait(vm={QB0tag})] + pst(4) + [qread(0, 1, n, QR, QB0tag) for n in range(12)]
        sc[54] = wait(vm={Vtag(0), Ktag(1)}); sc[55] = barrier()
        for db in range(12): mem[56 + db] = [vread(0, 2 * db), vread(0, 2 * db + 1)]
        sc[72] = m0_v(3)
        for j in range(3): mem[73 + 2 * j] = dma_v(3, j)
        sc[79] = adv(); sc[80] = m0_k(4)
        for j in range(3): mem[81 + 2 * j] = dma_k(4, j)
        A = soft_first(0, 0); B = soft_first(1, 48)
        return [comment("---- step 0")] + greedy(m, sc, mem, [A, B], {47: [(0, 0)], 95: [(1, 0)]}, capf=lambda g: 4 if g >= 63 else 2, over=True)
    if t == 16:
        sc, mem = fixed(16)
        if DIAG: sc[BAR_GAP] = [sc[BAR_GAP]] + stamp_save(16) + stamp(17)
        mem = {g: [o] for g, o in mem.items()}
        free = [g for g in range(0, 36) if g not in mem][:12]
        for n, g in enumerate(free): mem[g] = [qread(1, 1, n, QR, QBtag)]
        ga = free[-1] + 1; gb = 50
        def put(ops, gaps):
            gaps = [g for g in gaps if g not in DMA_GAPS]
            for i, o in enumerate(ops): mem.setdefault(gaps[i * len(gaps) // len(ops)], []).append(o)
        wa = epi_writes(0); wb = epi_writes(1)
        put(wa[:12] + spread(wa[12:], [aread(n) for n in range(6)]), range(ga, gb))
        put(spread(wb[:12], [aread(n) for n in range(6, 12)]) + wb[12:], range(gb, 96))
        bt = at(0, btail(False))
        HA = at(0, epi_soff(0, 0) + epi_head(0, 0))
        EA = at(999, epi_valu(0, PK))
        A = soft_first(0, 0)
        HB = at(10, epi_soff(0, 1) + epi_head(0, 1))
        EB = at(999, epi_valu(1, PK))
        B = soft_first(1, 48)
        return [comment("---- step 16")] + greedy(m, sc, mem, [HA, bt, HB, A, B, EA, EB],
                 {10: [(1, 0)], ga: [(0, 0), (5, 0)], gb: [(2, 0), (6, 0)], 72: [(3, 0)], 95: [(4, 0)]}, capf=lambda g: CAP16, over=True)
    if t == 32:
        m = mfmas(32)[24:48]
        out = [comment("---- tail")] + interleave(btail(False), epi_head(1, 0)) + epi_soff(1, 0) + epi_soff(1, 1)
        nf = 4
        EA = at(0, epi_qb(0, 0, False, range(nf)))
        EB = at(0, epi_head(1, 1))
        out += greedy(m + [None], {}, {}, [EB, EA], {24: [(0, 0), (1, 0)]})
        out += epi_qb(0, 0, PK, range(nf, 12)) + epi_reads(0, 0)
        out += spread(epi_qb(0, 1, PK), epi_stores(0, 0, SM2), 12) + epi_reads(0, 1)
        out += spread(epi_qb(1, 0, PK), epi_stores(0, 1, SM2), 12) + epi_reads(1, 0)
        out += spread(epi_qb(1, 1, PK), epi_stores(1, 0, SM2), 12) + epi_reads(1, 1)
        out += epi_stores(1, 1, SM2)
        return out

def prologue():
    o = []
    o.append(raw("s_load_dwordx8 s[36:43], s[0:1], 0", "smem", wr=R("s", 36, 8)))
    if DIAG:
        o.append(raw("s_load_dwordx2 s[62:63], s[0:1], 40", "smem", wr=["s62", "s63"]))
        o.append(raw("s_memtime s[64:65]", "smem", wr=["s64", "s65"]))
        o.append(raw("s_memrealtime s[66:67]", "smem", wr=["s66", "s67"]))
    if SPIN and not DIAG: o.append(raw("s_memrealtime s[66:67]", "smem", wr=["s66", "s67"]))
    o.append(salu("s_cmp_ge_u32", None, "s2", 256))
    o.append(raw("s_cbranch_scc1 L_end", "branch"))
    if "only" in OPT:
        o.append(salu("s_and_b32", "s31", "s2", OPT["only"]))
        o.append(raw("s_cbranch_scc1 L_end", "branch"))
    lane, i_, g_, t0, t1, t2 = "v1", "v2", "v3", "v4", "v5", "v6"
    o.append(valu("v_lshrrev_b32", t0, 6, "v0"))
    o.append(valu("v_and_b32", lane, 63, "v0"))
    o.append(valu("v_readfirstlane_b32", sW, t0))
    o.append(valu("v_and_b32", i_, 15, lane))
    o.append(valu("v_lshrrev_b32", g_, 4, lane))
    if OPT.get("map") == "adj":
        o.append(salu("s_lshr_b32", "s31", "s2", 1))
        o.append(salu("s_and_b32", "s32", "s2", 1))
    else:
        o.append(salu("s_and_b32", "s31", "s2", 7))
        o.append(salu("s_lshr_b32", "s32", "s2", 3))
        o.append(salu("s_lshl_b32", "s31", "s31", 4))
        o.append(salu("s_lshr_b32", "s33", "s32", 1))
        o.append(salu("s_add_u32", "s31", "s31", "s33"))
        o.append(salu("s_and_b32", "s32", "s32", 1))
    o.append(salu("s_mul_i32", "s31", "s31", 2 * HEAD))
    o.append(salu("s_mul_i32", sWL, sW, 3072))
    o.append(salu("s_mul_i32", sWS, sW, STG))
    o.append(salu("s_add_u32", sWS, sWS, QST))
    o.append(salu("s_add_u32", sKV, "s31", sWL))
    o.append(salu("s_mul_i32", "s32", "s32", 256 * 384))
    o.append(salu("s_mul_i32", "s33", sW, 64 * 384))
    o.append(salu("s_add_u32", sQB, "s31", "s32"))
    o.append(salu("s_add_u32", sQB, sQB, "s33"))
    o.append(salu("s_mov_b32", sC, hex(CBITS)))
    o.append(salu("s_mov_b32", sTHR, hex(THR)))
    o.append(salu("s_mov_b32", "s34", "0x31756420"))
    o.append(salu("s_and_b32", "s35", sW, 1))
    o.append(salu("s_lshl_b32", "s35", "s35", 4))
    o.append(valu("v_lshlrev_b32", f"v{SV}", 4, lane))
    for j in range(3):
        o.append(valu("v_add_u32", t0, 64 * j, lane))
        o.append(valu("v_mul_u32_u24", f"v{ER[j]}", 171, t0))
        o.append(valu("v_lshrrev_b32", t0, 13, f"v{ER[j]}"))
        o.append(valu("v_lshl_add_u32", t0, t0, 2, "s35"))
        o.append(valu("v_bfe_u32", t0, "s34", t0, 3))
        o.append(valu("v_lshlrev_b32", t0, 4, t0))
        o.append(valu("v_xor_b32", f"v{DV[j]}", t0, f"v{SV}"))
    o.append(salu("s_mul_i32", "s33", sW, TILE))
    o.append(salu("s_add_u32", "s33", "s33", 3 * TILE))
    o.append(raw("s_waitcnt lgkmcnt(0)", "salu"))
    o += pst(0)
    for base, src in ((8, 38), (4, 36), (12, 40), (16, 42)):
        o.append(salu("s_mov_b32", f"s{base}", f"s{src}"))
        o.append(salu("s_and_b32", f"s{base+1}", f"s{src+1}", "0xffff"))
        o.append(salu("s_mov_b32", f"s{base+2}", "0x3000000"))
        o.append(salu("s_mov_b32", f"s{base+3}", "0x20000"))
    def kd(t): return [m0_k(t), nop(1)] + [dma_k(t, j) for j in range(3)]
    def vd(t): return [m0_v(t), nop(1)] + [dma_v(t, j) for j in range(3)]
    def qd(x):
        r = []
        for gi in range(4):
            r.append(salu("s_add_u32", "m0", ("s33", sWS)[x], gi * 3072))
            r.append(salu("s_add_u32", sT[0], sQB, x * TILE + gi * 3072))
            r += [dma(f"v{DV[j]}", SQ, sT[0], 1024 * j, lds=(QAtag, QB0tag)[x], mods=QM) for j in range(3)]
        return r
    o += kd(0) + qd(0)
    o += pst(1)
    o.append(valu("v_mul_u32_u24", t1, 384, i_))
    o.append(valu("v_lshl_add_u32", f"v{QV}", g_, 4, t1))
    for j in range(3):
        o.append(valu("v_lshrrev_b32", t0, 12, f"v{ER[j]}"))
        o.append(valu("v_lshl_add_u32", t0, t0, 3 if RS == 392 else 4, f"v{SV}"))
        o.append(salu("s_add_u32", "s32", sWS, 1024 * j))
        o.append(valu("v_add_u32", f"v{ER[j]}", "s32", t0))
    o.append(valu("v_mul_u32_u24", t0, RS, i_))
    o.append(valu("v_lshl_add_u32", t0, g_, 3, t0))
    o.append(valu("v_add_u32", f"v{EW}", sWS, t0))
    o.append(valu("v_lshrrev_b32", t0, 1, i_))
    o.append(valu("v_lshlrev_b32", t0, 2, t0))
    o.append(valu("v_bfe_u32", t0, "s34", t0, 3))
    o.append(valu("v_xor_b32", t0, t0, g_))
    o.append(valu("v_lshl_add_u32", f"v{KA[0]}", t0, 4, t1))
    o.append(valu("v_xor_b32", f"v{KA[1]}", 64, f"v{KA[0]}"))
    o.append(valu("v_bfe_u32", t0, i_, 1, 2))
    o.append(valu("v_lshl_add_u32", t0, t0, 2, "s35"))
    o.append(valu("v_bfe_u32", t0, "s34", t0, 3))
    o.append(valu("v_xor_b32", t0, t0, g_))
    o.append(valu("v_lshl_add_u32", t0, t0, 4, t1))
    o.append(valu("v_add_u32", f"v{QR[0]}", sWS, t0))
    o.append(valu("v_xor_b32", f"v{QR[1]}", 64, f"v{QR[0]}"))
    o.append(valu("v_add_u32", "v10", "s33", t0))
    o.append(valu("v_xor_b32", "v11", 64, "v10"))
    o.append(valu("v_lshrrev_b32", t0, 2, i_))
    o.append(valu("v_lshl_add_u32", t0, g_, 2, t0))
    o.append(valu("v_lshrrev_b32", t2, 1, t0))
    o.append(valu("v_lshlrev_b32", t2, 2, t2))
    o.append(valu("v_bfe_u32", t2, "s34", t2, 3))
    o.append(valu("v_mul_u32_u24", t0, 384, t0))
    o.append(valu("v_bfe_u32", t1, i_, 1, 1))
    o.append(valu("v_xor_b32", t2, t2, t1))
    o.append(valu("v_lshl_add_u32", t0, t2, 4, t0))
    o.append(valu("v_and_b32", t1, 1, i_))
    o.append(valu("v_lshl_add_u32", t0, t1, 3, t0))
    o.append(valu("v_add_u32", f"v{VA[0]}", VRING, t0))
    for k in range(1, 4): o.append(valu("v_xor_b32", f"v{VA[k]}", 32 * k, f"v{VA[0]}"))
    if DIAG: o += [valu("v_mov_b32", f"v{TS}", 0), valu("v_mov_b32", f"v{TS2}", 0)]
    o.append(I("TOUCH_ENTRY", "label", cost=0))
    o += pst(2) + qd(1)
    o.append(wait(vm={Ktag(0)}))
    o += pst(3)
    o.append(barrier())
    o += [kread(0, n) for n in range(12)]
    o.append(wait(vm={QAtag}))
    o += [qread(0, 0, n, [10, 11], QAtag) for n in range(12)]
    if DIAG: o += stamp(0)
    return o

def slow_path():
    o = []
    segs = []
    lane, i_, g_ = f"v{KA[0]}", f"v{KA[1]}", f"v{VA[1]}"
    lin, tra = f"v{SV}", f"v{VA[0]}"
    o.append(label("L_slow"))
    o.append(raw("s_waitcnt vmcnt(0) lgkmcnt(0)", "salu"))
    o.append(valu("v_mbcnt_lo_u32_b32", lane, -1, 0))
    o.append(valu("v_mbcnt_hi_u32_b32", lane, -1, lane))
    o.append(valu("v_and_b32", i_, 15, lane))
    o.append(valu("v_lshrrev_b32", g_, 4, lane))
    o.append(valu("v_lshrrev_b32", tra, 2, i_))
    o.append(valu("v_lshl_add_u32", tra, g_, 2, tra))
    o.append(valu("v_mul_u32_u24", tra, 384, tra))
    o.append(valu("v_and_b32", i_, 3, i_))
    o.append(valu("v_lshl_add_u32", tra, i_, 3, tra))
    o.append(salu("s_mov_b32", "s69", sWS))
    o.append(valu("v_add_u32", tra, "s69", tra))
    o.append(salu("s_mov_b32", "s68", 0))
    o.append(label("L_slow_combo"))
    o.append(salu("s_bitcmp1_b32", None, "s70", "s68"))
    o.append(raw("s_cbranch_scc0 L_slow_next", "branch"))
    o.append(salu("s_lshr_b32", "s71", "s68", 1))
    o.append(salu("s_and_b32", "s72", "s68", 1))
    o.append(salu("s_mul_i32", "s71", "s71", HEAD))
    o.append(salu("s_mul_i32", "s72", "s72", TILE))
    o.append(salu("s_add_u32", sT[0], sQB, "s71"))
    o.append(salu("s_add_u32", sT[0], sT[0], "s72"))
    o.append(salu("s_add_u32", sT[1], sT[0], 6144))
    o.append(salu("s_add_u32", "s73", "s31", "s71"))
    for qb in range(2):
        o += [bload(rr("a", QA(0, 0, qb, cc), 4), f"v{QV}", SQ, sT[qb], cc * 64) for cc in range(6)]
        o.append(valu("v_mov_b32", f"v{NM(0,qb)}", "0xff800000"))
    for r in range(96): o.append(valu("v_mov_b32", f"v{r}", 0))
    o.append(raw("s_waitcnt vmcnt(0)", "salu"))
    o.append(salu("s_mov_b32", "s74", 0))
    o.append(label("L_slow_pass"))
    o.append(salu("s_mov_b32", "s75", "s73"))
    o.append(salu("s_add_u32", "s76", "s73", HEAD))
    o.append(label("L_slow_tile"))
    o.append(salu("s_add_u32", "s77", "s75", 6144))
    for kb in range(2):
        o += [bload(rr("a", KF(kb, cc), 4), f"v{QV}", SK, ("s75", "s77")[kb], cc * 64) for cc in range(6)]
    o.append(salu("s_mov_b32", "m0", "s69"))
    o.append(salu("s_mov_b32", "s77", "s75"))
    for k in range(3):
        o += [dma(lin, SVV, "s77", 1024 * j) for j in range(4)]
        if k < 2:
            o.append(salu("s_add_u32", "m0", "m0", 4096))
            o.append(salu("s_add_u32", "s77", "s77", 4096))
    o.append(raw("s_waitcnt vmcnt(0)", "salu"))
    o += [qk(0, 0, n) for n in range(24)]
    o.append(nop(8))
    o.append(salu("s_cmp_eq_u32", None, "s74", 0))
    o.append(raw("s_cbranch_scc0 L_slow_p2", "branch"))
    for qb in range(2):
        for r in range(0, 8, 2):
            o.append(valu("v_max3_f32", f"v{NM(0,qb)}", f"v{NM(0,qb)}", f"v{P(0,qb)+r}", f"v{P(0,qb)+r+1}"))
    o.append(raw("s_branch L_slow_tile_end", "branch"))
    o.append(label("L_slow_p2"))
    for n in range(24):
        db, h = divmod(n, 2)
        o.append(ds_read("ds_read_b64_tr_b16", rr("a", VF(db) + 2 * h, 2), tra, h * 6144 + db * 32))
        if n == 11: o.append(raw("s_waitcnt lgkmcnt(0)", "salu"))
    for c in range(4): o += [f_(0, c, r) for r in range(4)]
    for c in range(4): o += [e_(0, c, r) for r in range(4)]
    o.append(nop(1))
    for c in range(4): o += [a_(0, c, r) for r in range(4)]
    for c in range(4): o += [cv(0, c, 0), cv(0, c, 1)]
    o.append(raw("s_waitcnt lgkmcnt(0)", "salu"))
    o.append(nop(2))
    o += [pv(1, 0, n) for n in range(24)]
    o.append(label("L_slow_tile_end"))
    o.append(nop(8))
    o.append(salu("s_add_u32", "s75", "s75", TILE))
    o.append(salu("s_cmp_lt_u32", None, "s75", "s76"))
    o.append(raw("s_cbranch_scc1 L_slow_tile", "branch"))
    o.append(salu("s_cmp_eq_u32", None, "s74", 0))
    o.append(raw("s_cbranch_scc0 L_slow_fin", "branch"))
    mx = maxops(0)
    for qb in range(2): o += mx[qb][4:] + [valu("v_mov_b32", f"v{L(0,qb)}", 0)]
    o.append(salu("s_mov_b32", "s74", 1))
    o.append(raw("s_branch L_slow_pass", "branch"))
    o.append(label("L_slow_fin"))
    for a in range(4): o.append(salu("s_add_u32", sE[a], sT[0], a * 3072))
    o += epi_head(0, 0) + epi_qb(0, 0, False) + epi_qb(0, 1, False) + epi_reads(0, 0) + epi_reads(0, 1)
    o.append(raw("s_waitcnt lgkmcnt(0)", "salu"))
    o += epi_stores(0, 0, "") + epi_stores(0, 1, "")
    o.append(raw("s_waitcnt vmcnt(0)", "salu"))
    o.append(label("L_slow_next"))
    o.append(salu("s_add_u32", "s68", "s68", 1))
    o.append(salu("s_cmp_lt_u32", None, "s68", 4))
    o.append(raw("s_cbranch_scc1 L_slow_combo", "branch"))
    o.append(raw("s_endpgm", "branch"))
    return o

def finish():
    o = []
    if DIAG:
        o.append(raw("s_waitcnt lgkmcnt(0)", "salu"))
        o += stamp_save(32) + stamp(33)
        o.append(raw("s_waitcnt lgkmcnt(0)", "salu"))
        o += stamp_save(33)
        o.append(raw("s_waitcnt vmcnt(0)", "salu"))
        o += stamp(34)
        o.append(raw("s_waitcnt lgkmcnt(0)", "salu"))
        o += stamp_save(34)
        for i in range(5): o.append(valu("v_writelane_b32", f"v{TS}", f"s{68+2*i}", 44 + i))
        o.append(salu("s_mov_b32", "s78", 35))
        o.append(valu("v_writelane_b32", f"v{TS}", "s64", 40))
        o.append(valu("v_writelane_b32", f"v{TS}", "s66", 41))
        o.append(valu("v_writelane_b32", f"v{TS}", "s96", 42))
        o.append(valu("v_writelane_b32", f"v{TS}", "s78", 43))
        o.append(salu("s_mov_b32", "s80", "s62"))
        o.append(salu("s_and_b32", "s81", "s63", "0xffff"))
        o.append(salu("s_mov_b32", "s82", "0x10000000"))
        o.append(salu("s_mov_b32", "s83", "0x20000"))
        o.append(salu("s_lshl_b32", "s84", "s2", 2))
        o.append(salu("s_add_u32", "s84", "s84", sW))
        o.append(salu("s_lshl_b32", "s84", "s84", 9))
        o.append(valu("v_lshrrev_b32", f"v{T[10]}", 2, f"v{SV}"))
        o.append(bstore(f"v{TS}", f"v{T[10]}", "s[80:83]", "s84", 0, op="buffer_store_dword"))
        o.append(bstore(f"v{TS2}", f"v{T[10]}", "s[80:83]", "s84", 256, op="buffer_store_dword"))
    if SPIN:
        o.append(label("L_spin"))
        o.append(raw("s_sleep 2", "salu"))
        o.append(raw("s_memrealtime s[78:79]", "smem"))
        o.append(raw("s_waitcnt lgkmcnt(0)", "salu"))
        o.append(salu("s_sub_u32", "s78", "s78", "s66"))
        o.append(salu("s_cmp_lt_u32", None, "s78", SPIN))
        o.append(raw("s_cbranch_scc1 L_spin", "branch"))
    o.append(salu("s_mov_b32", "s70", 15 if FORCE_SLOW else 0))
    for combo in range(4):
        f0 = FLAG(combo >> 1, combo & 1, 0)
        o.append(salu("s_or_b64", "s[72:73]", f"s[{f0}:{f0+1}]", f"s[{f0+2}:{f0+3}]"))
        o.append(salu("s_cselect_b32", "s71", 1 << combo, 0))
        o.append(salu("s_or_b32", "s70", "s70", "s71"))
    o.append(raw("s_cbranch_scc1 L_slow", "branch"))
    o.append(label("L_end"))
    o.append(raw("s_endpgm", "branch"))
    return o

def sizes(tr):
    import subprocess, re as _re
    texts = sorted({i.t for i in tr if i.k != "label"})
    br = lambda t: t.startswith("s_cbranch") or t.startswith("s_branch")
    src = '.amdgcn_target "amdgcn-amd-amdhsa--gfx950"\n.text\n' + "\n".join(t for t in texts if not br(t)) + "\n"
    open("sz.s", "w").write(src)
    r = subprocess.run(["llvm-mc", "-triple=amdgcn-amd-amdhsa", "-mcpu=gfx950", "-show-encoding", "sz.s"], capture_output=True, text=True)
    assert r.returncode == 0, r.stderr[:2000]
    enc = [len(m.split(",")) for m in _re.findall(r"encoding: \[(.*?)\]", r.stdout)]
    nb = [t for t in texts if not br(t)]
    assert len(enc) == len(nb)
    d = dict(zip(nb, enc))
    for t in texts:
        if br(t): d[t] = 4
    return d

def add_touch(tr):
    k = [n for n, i in enumerate(tr) if i.t == "TOUCH_ENTRY"][0]
    pro, body = tr[:k], tr[k + 1:]
    if not TOUCH: return pro + body
    sz = sizes(tr[:k] + body)
    out = []; addr = 4; page = 1; stubs = []
    for n, ins in enumerate(body):
        out.append(ins)
        if ins.k == "label": continue
        addr += sz[ins.t]
        if addr >= page * 4096:
            nx = body[n + 1] if n + 1 < len(body) else None
            nofree = [j for j in body[n + 1:n + 12] if j.k == "mfma"] == []
            if (ins.k == "mfma" and nx.k not in SCALAR) or nofree or addr - page * 4096 >= 44:
                st = raw("STUB", "branch"); stubs.append((page, st, addr - page * 4096))
                out += [label(f"L_pg{page}"), st]; addr += 4; page += 1
    last = page - 1
    for p, st, off in stubs:
        st.t = f"s_cbranch_execz L_pg{p+4}" if p + 4 <= last else "s_cbranch_execz L_main"
        assert off <= 60, off
    print("pages", last, "body bytes", addr, "stub offsets", [o for _, _, o in stubs])
    ent = [salu("s_mov_b64", "exec", 0)]
    for w in range(3):
        ent += [salu("s_cmp_eq_u32", None, sW, w), raw(f"s_cbranch_scc1 L_pg{w+1}", "branch")]
    ent += [raw("s_branch L_pg4", "branch"), I(".p2align 12", "label", cost=0), label("L_main"), salu("s_mov_b64", "exec", -1)]
    return pro + ent + out

def build():
    tr = prologue()
    for t in range(33): tr += step(t)
    tr += finish()
    cut = OPT.get("cut", "").split("+")
    if "st" in cut: tr = [i for i in tr if not (i.k == "vst" and "dwordx4" in i.t)]
    if "dw" in cut: tr = [i for i in tr if not i.t.startswith("ds_write")]
    if "dr" in cut: tr = [i for i in tr if not i.t.startswith("ds_read_b128 v")]
    if "pk" in cut: tr = [i for i in tr if not i.t.startswith("v_pk_mul")]
    if "add" in cut: tr = [i for i in tr if not i.t.startswith("v_add_f32")]
    if "fma" in cut: tr = [i for i in tr if not i.t.startswith("v_fma_f32")]
    if "mul" in cut:
        for i in tr:
            if i.t.startswith("v_fma_f32"):
                d = i.t.split()[1].strip(","); i.t = f"v_mul_f32 {d}, {sC}, {d}"
    if "exp" in cut: tr = [i for i in tr if not i.t.startswith("v_exp_f32")]
    if "kr" in cut or "vr" in cut:
        n0 = [n for n, i in enumerate(tr) if i.t == "; ---- step 1"][0]
        tr = tr[:n0] + [i for i in tr[n0:] if not (("kr" in cut and i.t.startswith("ds_read_b128 a")) or ("vr" in cut and i.t.startswith("ds_read_b64_tr")))]
    tr = insert_waits(tr)
    tr, added = fix_hazards(tr)
    errs, issued = verify(tr, private=lambda tag: tag in (QBtag, QB0tag, QAtag), alias={("QA", 0): [("K", 3), ("V", 3), ("V", 2)]})
    for e in errs[:30]: print("ERR", e)
    assert not errs
    assert all(v == (12 if k in (QBtag, QB0tag, QAtag) else 3) for k, v in issued.items()) and len(issued) == 67, issued
    cur = "pro"; seg = {}
    for ins in tr:
        if ins.t.startswith("; ----"): cur = ins.t[7:]
        seg.setdefault(cur, []).append(ins)
    tot = 0
    for k, s in seg.items():
        c = est_cycles(s); tot += c
        if k in ("pro", "step 0", "step 1", "step 2", "step 8", "step 15", "step 16", "step 17", "step 18", "step 31", "tail"):
            print(f"{k:8s} instrs {len(s):4d} est cycles {c:5d} nops {sum(1 for i in s if i.k=='nop')} waits {sum(1 for i in s if i.k=='wait')}")
    print("total est cycles", tot)
    sp, _ = fix_hazards(slow_path())
    return add_touch(tr) + sp

HDR = open("standalone__mha_softmax__near_ridge.s.ref").read().split("; @launch")[0]
def main():
    tr = build()
    o = [HDR + f"; @launch grid=(256,1,1) block=(256,1,1) lds={LDS_BYTES}",
         '.amdgcn_target "amdgcn-amd-amdhsa--gfx950"', ".text", f".globl {KN}", ".p2align 8",
         f".type {KN},@function", f"{KN}:"]
    for ins in tr: o.append(ins.t if ins.k == "label" else "  " + ins.t)
    o.append(f'''.section .rodata,"a"
.p2align 6
.amdhsa_kernel {KN}
  .amdhsa_next_free_vgpr 512
  .amdhsa_next_free_sgpr 102
  .amdhsa_accum_offset 256
  .amdhsa_group_segment_fixed_size 0
  .amdhsa_kernarg_size 48
  .amdhsa_user_sgpr_count 2
  .amdhsa_user_sgpr_kernarg_segment_ptr 1
  .amdhsa_system_sgpr_workgroup_id_x 1
.end_amdhsa_kernel''')
    open(sys.argv[1], "w").write("\n".join(o) + "\n")
main()
```
